```python
import torch

def _softmax(x, axis=-1):
    return torch.softmax(x, dim=axis)
def _gelu(x):
    return torch.nn.functional.gelu(x, approximate="tanh")
def _silu(x):
    return torch.nn.functional.silu(x)
def _sigmoid(x):
    return torch.sigmoid(x)
def _layernorm(x, axis=-1, eps=1e-5):
    m = x.mean(dim=axis, keepdim=True)
    v = x.var(dim=axis, keepdim=True, unbiased=False)
    return (x - m) / torch.sqrt(v + eps)
def _scatter_add(tgt, idx, src, axis=0):
    return tgt.clone().index_add_(axis, idx, src)
def _segment_sum(src, seg, n):
    out = torch.zeros((n,) + src.shape[1:], dtype=src.dtype)
    return out.index_add_(0, seg, src)
def _pad(x, pw):
    flat = tuple(v for pair in reversed(pw) for v in pair)
    return torch.nn.functional.pad(x, flat)

kernel_name = 'concat_heads__sliding_block_cached__gqa_block_cached__decode'

def setup_inputs():

    _w = (lambda a: (lambda t: t.to(torch.bfloat16) if t.is_floating_point() else t)(torch.as_tensor(a)))
    def _A_setup():
        B, Sq, D = 1, 1, 576
        Hq, Hkv, Sk, Dh = 32, 16, 32768, 128
        assert Hq % Hkv == 0, (Hq, Hkv)
        return {
            "x": _w((lambda *s: torch.randn(*s, dtype=torch.bfloat16) * 0.8)(B, Sq, D)),
            "k_cache": _w((lambda *s: torch.randn(*s, dtype=torch.bfloat16) * 1.6)(B, Hkv, Sk, Dh)),
            "v_cache": _w((lambda *s: torch.randn(*s, dtype=torch.bfloat16) * 0.2)(B, Hkv, Sk, Dh)),
            "wq": _w((lambda *s: torch.randn(*s, dtype=torch.bfloat16) * 1.6)(D, Hq * Dh) * (D ** -0.5)),
            "wo": _w((lambda *s: torch.randn(*s, dtype=torch.bfloat16) * 0.2)(Hq * Dh, D) * ((Hq * Dh) ** -0.5)),
        }
    _A_in = _A_setup()

    def _B_setup():
        B, Sq, D = 1, 1, 576
        Hq, Hkv, Sk, Dh = 32, 16, 32768, 128
        assert Hq % Hkv == 0, (Hq, Hkv)
        return {
            "x": _w((lambda *s: torch.randn(*s, dtype=torch.bfloat16) * 0.8)(B, Sq, D)),
            "k_cache": _w((lambda *s: torch.randn(*s, dtype=torch.bfloat16) * 1.6)(B, Hkv, Sk, Dh)),
            "v_cache": _w((lambda *s: torch.randn(*s, dtype=torch.bfloat16) * 0.2)(B, Hkv, Sk, Dh)),
            "wq": _w((lambda *s: torch.randn(*s, dtype=torch.bfloat16) * 1.6)(D, Hq * Dh) * (D ** -0.5)),
            "wo": _w((lambda *s: torch.randn(*s, dtype=torch.bfloat16) * 0.2)(Hq * Dh, D) * ((Hq * Dh) ** -0.5)),
        }
    _B_in = _B_setup()

    return {
        "A_x": _A_in["x"],
        "A_k_cache": _A_in["k_cache"],
        "A_v_cache": _A_in["v_cache"],
        "A_wq": _A_in["wq"],
        "A_wo": _A_in["wo"],
        "B_x": _B_in["x"],
        "B_k_cache": _B_in["k_cache"],
        "B_v_cache": _B_in["v_cache"],
        "B_wq": _B_in["wq"],
        "B_wo": _B_in["wo"],
    }

def reference(A_x, A_k_cache, A_v_cache, A_wq, A_wo, B_x, B_k_cache, B_v_cache, B_wq, B_wo):
    def _A_ref(x, k_cache, v_cache, wq, wo):
        B, Sq, D = x.shape
        Hq, Dh = 32, 128
        Hkv, Sk = k_cache.shape[1], k_cache.shape[2]
        W = min(4096, max(256, Sk // 4))
        rep = Hq // Hkv
        q = (lambda x, *d: x.permute(*d))((x @ wq).reshape(B, Sq, Hq, Dh), 0, 2, 1, 3)
        k = (lambda x, n, axis: torch.repeat_interleave(x, n, dim=axis))(k_cache[:, :, Sk - W:, :], rep, axis=1)
        v = (lambda x, n, axis: torch.repeat_interleave(x, n, dim=axis))(v_cache[:, :, Sk - W:, :], rep, axis=1)
        scores = torch.einsum("bhqd,bhkd->bhqk", q, k) * (Dh ** -0.5)
        p = _softmax(scores, axis=-1)
        o = torch.einsum("bhqk,bhkd->bhqd", p, v)
        return (lambda x, *d: x.permute(*d))(o, 0, 2, 1, 3).reshape(B, Sq, Hq * Dh) @ wo

    def _B_ref(x, k_cache, v_cache, wq, wo):
        B, Sq, D = x.shape
        Hq, Dh = 32, 128
        Hkv = k_cache.shape[1]
        rep = Hq // Hkv
        q = (lambda x, *d: x.permute(*d))((x @ wq).reshape(B, Sq, Hq, Dh), 0, 2, 1, 3)
        k = (lambda x, n, axis: torch.repeat_interleave(x, n, dim=axis))(k_cache, rep, axis=1)
        v = (lambda x, n, axis: torch.repeat_interleave(x, n, dim=axis))(v_cache, rep, axis=1)
        scores = torch.einsum("bhqd,bhkd->bhqk", q, k) * (Dh ** -0.5)
        p = _softmax(scores, axis=-1)
        o = torch.einsum("bhqk,bhkd->bhqd", p, v)
        return (lambda x, *d: x.permute(*d))(o, 0, 2, 1, 3).reshape(B, Sq, Hq * Dh) @ wo

    a = _A_ref(A_x, A_k_cache, A_v_cache, A_wq, A_wo)
    b = _B_ref(B_x, B_k_cache, B_v_cache, B_wq, B_wo)
    return torch.concatenate([a, b], axis=-1)
```

```python
import sys, math, struct

NAME = "concat_heads__sliding_block_cached__gqa_block_cached__decode"

HEADER = """; Kernarg layout for this problem (104 bytes, ptrs only, base s[0:1]):
"""


def f32bits(x):
    return struct.unpack("<I", struct.pack("<f", x))[0]


class Cfg:
    D = 4
    S = 26
    stamps = False
    codepf = True
    kvpol = "nt"
    wpol = "nt"
    spin = 1 << 14
    def __init__(self, **kw):
        for k, v in kw.items():
            setattr(self, k, v)


def gen(cfg):
    D, S = cfg.D, cfg.S
    NS = 4 + S
    NT = 512 - 16 * S
    L = []
    def e(s):
        for ln in s.strip("\n").split("\n"):
            L.append("    " + ln.strip() if not ln.strip().endswith(":") else ln.strip())
    WS_CNT = 0x1000
    WS_QM = 0x10000
    WS_ML = 0x30000
    WS_H1 = 0x40000
    WS_H2 = 0x140000
    WS_SZ = 0x400000
    RING = 4 * D * 8192
    L_Q = RING
    L_MO = L_Q + 1024
    L_MML = L_MO + 8192
    L_FL = L_MML + 4096
    LDS = L_FL + 64
    sAx, sAk, sAv, sAwq, sAwo, sBx, sBk, sBv = 4, 6, 8, 10, 12, 14, 16, 18
    sBwq, sBwo, sOut, sDbg, sWs, sE = 20, 22, 24, 26, 28, 30
    sTagA, sTagB = 32, 33
    sT0, sT1 = 34, 35
    rWS, rK, rV, rO = 36, 40, 44, 48
    sH, sJ, sWave, sC = 52, 53, 54, 55
    sTi, sTc, sOff, sIrel, sCrel, sRB, sLanded, sMode, sQ, sTk, sDyn, sBst, sCnt, sSpin, sN2 = range(56, 71)
    sMat, sI, sCb, sRbk = 56, 57, 58, 59
    sMsk = 60
    sPc = 62
    sStamp = 72
    def srd(r): return f"s[{r}:{r+3}]"
    def vr(a, n=4): return f"v[{a}:{a+n-1}]"
    def stamp(i):
        if cfg.stamps:
            e(f"s_memrealtime s[{sStamp+2*i}:{sStamp+2*i+1}]")
    NSTAMP = 10

    L.append(HEADER.rstrip("\n"))
    L.append(f"; @launch grid=(256,1,1) block=(320,1,1) lds={LDS}")
    L.append('.amdgcn_target "amdgcn-amd-amdhsa--gfx950"')
    L.append(".text")
    L.append(f".globl {NAME}_kernel")
    L.append(".p2align 8")
    L.append(f".type {NAME}_kernel,@function")
    L.append(f"{NAME}_kernel:")
    e(f"""
    s_cmp_ge_u32 s2, 256
    s_cbranch_scc1 L_end
    s_load_dwordx16 s[4:19], s[0:1], 0
    s_load_dwordx8 s[20:27], s[0:1], 64
    s_load_dwordx2 s[28:29], s[0:1], 96
    """)
    stamp(0)
    vL, vG, vP = 0, 1, 2
    vSelE, vSelO = 4, 8
    vT = 12
    e(f"""
    v_lshrrev_b32 v{vT}, 6, v0
    v_and_b32 v{vL}, 63, v0
    v_readfirstlane_b32 s{sWave}, v{vT}
    v_lshrrev_b32 v{vG}, 4, v{vL}
    v_and_b32 v{vP}, 15, v{vL}
    s_lshr_b32 s{sH}, s2, 4
    s_and_b32 s{sJ}, s2, 15
    s_cmp_eq_u32 s{sWave}, 4
    s_cbranch_scc1 L_service
    """)

    def selectors():
        e(f"""
        v_and_b32 v{vT}, 1, v{vL}
        v_bfe_u32 v{vT+1}, v{vL}, 1, 2
        v_mov_b32 v{vT+2}, 0x0c0c0100
        v_mov_b32 v{vT+3}, 0x01000c0c
        v_cmp_eq_u32 vcc, 1, v{vT}
        v_mov_b32 v{vT+4}, 0x0c0c0302
        v_mov_b32 v{vT+5}, 0x03020c0c
        v_cndmask_b32 v{vT+2}, v{vT+2}, v{vT+3}, vcc
        v_cndmask_b32 v{vT+4}, v{vT+4}, v{vT+5}, vcc
        v_mov_b32 v{vT+3}, 0x0c0c0c0c
        """)
        for j in range(4):
            e(f"""
            v_cmp_eq_u32 vcc, {j}, v{vT+1}
            s_nop 1
            v_cndmask_b32 v{vSelE+j}, v{vT+3}, v{vT+2}, vcc
            v_cndmask_b32 v{vSelO+j}, v{vT+3}, v{vT+4}, vcc
            """)

    def ws_srd():
        e(f"""
        s_mov_b32 s{rWS}, s{sWs}
        s_mov_b32 s{rWS+1}, s{sWs+1}
        s_mov_b32 s{rWS+2}, {WS_SZ:#x}
        s_mov_b32 s{rWS+3}, 0x20000
        """)

    vKg = 20
    vVg = 24
    vKl = 25
    vVl = 29
    vQa = 30
    vMOa, vMLa, vFl = 31, 32, 33
    vTk0, vTk1, vAt = 34, 35, 36
    vM, vLs = 38, 39
    vA = 40
    vAl, vMn, vU, vW = 45, 46, 47, 48
    vS = 52
    vO = 56
    vPp = 60
    vQ = 64
    vK = 80
    vV = 96
    vB = 112
    e(f"""
    v_xor_b32 v{vT}, v{vP}, v{vG}
    v_lshlrev_b32 v{vT+1}, 8, v{vG}
    """)
    for i in range(4):
        e(f"""
        v_xor_b32 v{vT+2}, {4*i}, v{vT}
        v_lshl_add_u32 v{vKg+i}, v{vT+2}, 4, v{vT+1}
        """)
    e(f"""
    v_lshlrev_b32 v{vVg}, 4, v{vL}
    s_mul_i32 s{sRB}, s{sWave}, {D*8192}
    s_lshl_b32 s{sT0}, s{sH}, 23
    s_lshl_b32 s{sT1}, s{sWave}, 12
    s_add_u32 s{sT0}, s{sT0}, s{sT1}
    s_lshl_b32 s{sOff}, s{sJ}, 16
    s_add_u32 s{sOff}, s{sOff}, {28672*256}
    s_add_u32 s{sOff}, s{sOff}, s{sT0}
    s_mul_i32 s{sBst}, s{sJ}, {S*64*256}
    s_add_u32 s{sBst}, s{sBst}, s{sT0}
    s_add_u32 s{sDyn}, s{sT0}, {64*S*4096}
    s_lshl_b32 s{sCnt}, s{sH}, 2
    s_add_u32 s{sCnt}, s{sCnt}, s{sWave}
    s_lshl_b32 s{sCnt}, s{sCnt}, 8
    s_add_u32 s{sCnt}, s{sCnt}, {WS_CNT}
    s_mov_b32 s{sTi}, 0
    s_mov_b32 s{sTc}, 0
    s_mov_b32 s{sIrel}, 0
    s_mov_b32 s{sCrel}, 0
    s_mov_b32 s{sMode}, 0
    s_mov_b32 s{sQ}, 0
    s_mov_b32 s{sSpin}, 0
    s_mov_b32 s{rK+2}, 0x8000000
    s_mov_b32 s{rK+3}, 0x20000
    s_mov_b32 s{rV+2}, 0x8000000
    s_mov_b32 s{rV+3}, 0x20000
    s_waitcnt lgkmcnt(0)
    s_mov_b32 s{rK}, s{sAk}
    s_mov_b32 s{rK+1}, s{sAk+1}
    s_mov_b32 s{rV}, s{sAv}
    s_mov_b32 s{rV+1}, s{sAv+1}
    """)
    ws_srd()
    e("s_barrier")

    def issue_loads():
        e(f"""
        s_add_u32 m0, s{sRB}, s{sIrel}
        s_add_u32 s{sIrel}, s{sIrel}, 8192
        """)
        for i in range(4):
            e(f"buffer_load_dwordx4 v{vKg+i}, {srd(rK)}, s{sOff} offen offset:{i*1024} {cfg.kvpol} lds")
        e(f"""
        s_add_u32 m0, m0, 4096
        s_cmp_eq_u32 s{sIrel}, {D*8192}
        """)
        for i in range(4):
            e(f"buffer_load_dwordx4 v{vVg}, {srd(rV)}, s{sOff} offen offset:{i*1024} {cfg.kvpol} lds")
        e(f"""
        s_cselect_b32 s{sIrel}, 0, s{sIrel}
        s_add_u32 s{sOff}, s{sOff}, 16384
        """)

    def ticket_req(reg):
        e(f"""
        s_mov_b64 exec, 1
        v_mov_b32 v{reg}, 1
        v_mov_b32 v{vAt}, s{sT0}
        buffer_atomic_add v{reg}, v{vAt}, {srd(rWS)}, 0 offen sc0
        s_mov_b64 exec, -1
        """)

    e(f"s_mov_b32 s{sT0}, {WS_SZ:#x}")
    issue_loads(); ticket_req(vTk0)
    issue_loads(); ticket_req(vTk1)
    e(f"s_mov_b32 s{sTi}, 2")
    selectors()
    e(f"""
    v_lshlrev_b32 v{vT}, 8, v{vP}
    v_add_u32 v{vT}, s{sRB}, v{vT}
    v_xor_b32 v{vT+1}, v{vP}, v{vG}
    """)
    for j in range(4):
        e(f"""
        v_xor_b32 v{vT+2}, {4*j}, v{vT+1}
        v_lshl_add_u32 v{vKl+j}, v{vT+2}, 4, v{vT}
        """)
    e(f"""
    v_lshlrev_b32 v{vT}, 10, v{vG}
    v_lshl_add_u32 v{vT}, v{vP}, 4, v{vT}
    s_add_u32 s{sT0}, s{sRB}, 4096
    v_add_u32 v{vVl}, s{sT0}, v{vT}
    v_lshrrev_b32 v{vT}, 3, v{vP}
    v_lshlrev_b32 v{vT}, 8, v{vT}
    v_lshl_add_u32 v{vT}, v{vG}, 4, v{vT}
    v_add_u32 v{vQa}, {L_Q}, v{vT}
    s_lshl_b32 s{sT0}, s{sWave}, 10
    s_add_u32 s{sT0}, s{sT0}, {L_MO}
    v_lshlrev_b32 v{vT}, 4, v{vL}
    v_add_u32 v{vMOa}, s{sT0}, v{vT}
    s_lshl_b32 s{sT0}, s{sWave}, 9
    s_add_u32 s{sT0}, s{sT0}, {L_MML}
    v_lshlrev_b32 v{vT}, 3, v{vL}
    v_add_u32 v{vMLa}, s{sT0}, v{vT}
    v_mov_b32 v{vFl}, {L_FL}
    s_mov_b32 s{sC}, {f32bits(math.log2(math.e)/math.sqrt(128.0)):#x}
    v_mov_b32 v{vM}, 0xff800000
    v_mov_b32 v{vLs}, 0
    v_mov_b32 v{vO}, 0
    v_mov_b32 v{vO+1}, 0
    v_mov_b32 v{vO+2}, 0
    v_mov_b32 v{vO+3}, 0
    """)
    e(f"""
    L_loop:
    s_cmp_lg_u32 s{sMode}, 0
    s_cbranch_scc1 L_drain
    s_waitcnt vmcnt(9)
    s_sub_u32 s{sLanded}, s{sTi}, 1
    s_sub_u32 s{sT0}, s{sTi}, s{sTc}
    s_cmp_ge_u32 s{sT0}, {D}
    s_cbranch_scc1 L_cons
    s_cmp_ge_u32 s{sTi}, {NS}
    s_cbranch_scc1 L_dyn
    s_cmp_eq_u32 s{sTi}, 4
    s_cbranch_scc0 L_issue
    s_mov_b32 s{rK}, s{sBk}
    s_mov_b32 s{rK+1}, s{sBk+1}
    s_mov_b32 s{rV}, s{sBv}
    s_mov_b32 s{rV+1}, s{sBv+1}
    s_mov_b32 s{sOff}, s{sBst}
    L_issue:
    """)
    issue_loads()
    e(f"""
    s_cmp_ge_u32 s{sTi}, {NS-2}
    s_cselect_b32 s{sT0}, s{sCnt}, {WS_SZ:#x}
    s_bitcmp1_b32 s{sTi}, 0
    s_cbranch_scc1 L_tk1
    """)
    ticket_req(vTk0)
    e("s_branch L_tkd")
    e("L_tk1:")
    ticket_req(vTk1)
    e(f"""
    L_tkd:
    s_add_u32 s{sTi}, s{sTi}, 1
    L_cons:
    s_cmp_eq_u32 s{sQ}, 0
    s_cbranch_scc1 L_qwait
    L_cons1:
    s_mov_b32 s{sN2}, 0
    L_cons2:
    s_cmp_eq_u32 s{sTc}, 4
    s_cbranch_scc1 L_switch
    L_body:
    """)
    for j in range(4):
        e(f"v_add_u32 v{vA+j}, s{sCrel}, v{vKl+j}")
    e(f"v_add_u32 v{vA+4}, s{sCrel}, v{vVl}")
    for j in range(4):
        e(f"ds_read_b128 {vr(vK+4*j)}, v{vA+j}")
    for r in range(4):
        e(f"ds_read_b128 {vr(vV+4*r)}, v{vA+4} offset:{r*256}")
    e(f"""
    s_add_u32 s{sCrel}, s{sCrel}, 8192
    s_cmp_eq_u32 s{sCrel}, {D*8192}
    s_cselect_b32 s{sCrel}, 0, s{sCrel}
    s_add_u32 s{sTc}, s{sTc}, 1
    s_add_u32 s{sN2}, s{sN2}, 1
    """)
    for j in range(4):
        e(f"s_waitcnt lgkmcnt({7-j})")
        c = "0" if j == 0 else vr(vS)
        e(f"v_mfma_f32_16x16x32_bf16 {vr(vS)}, {vr(vK+4*j)}, {vr(vQ+4*j)}, {c}")
    e(f"""
    s_nop 7
    v_max3_f32 v{vT}, v{vS}, v{vS+1}, v{vS+2}
    v_max_f32 v{vT}, v{vT}, v{vS+3}
    v_mov_b32 v{vU}, v{vT}
    s_nop 1
    v_permlane32_swap_b32 v{vT}, v{vU}
    v_max_f32 v{vT}, v{vT}, v{vU}
    v_mov_b32 v{vU}, v{vT}
    s_nop 1
    v_permlane16_swap_b32 v{vT}, v{vU}
    v_max_f32 v{vT}, v{vT}, v{vU}
    v_mul_f32 v{vT}, s{sC}, v{vT}
    v_max_f32 v{vMn}, v{vM}, v{vT}
    v_sub_f32 v{vAl}, v{vM}, v{vMn}
    """)
    for r in range(4):
        e(f"v_fma_f32 v{vPp+r}, v{vS+r}, s{sC}, -v{vMn}")
    e(f"v_exp_f32 v{vAl}, v{vAl}")
    for r in range(4):
        e(f"v_exp_f32 v{vPp+r}, v{vPp+r}")
    e(f"v_mov_b32 v{vM}, v{vMn}")
    e(f"v_cvt_pk_bf16_f32 v{vW}, v{vPp}, v{vPp+1}")
    e(f"v_cvt_pk_bf16_f32 v{vW+1}, v{vPp+2}, v{vPp+3}")
    for r in range(4):
        e(f"v_mul_f32 v{vO+r}, v{vAl}, v{vO+r}")
    def perms(dst, src, odd):
        for j in range(4):
            e(f"v_perm_b32 v{dst+j}, v{src}, v{src}, v{(vSelO if odd else vSelE)+j}")
    perms(vB, vW, False)
    perms(vB + 4, vW, True)
    e("s_waitcnt lgkmcnt(0)")
    e(f"v_mfma_f32_16x16x32_bf16 {vr(vO)}, {vr(vV)}, {vr(vB)}, {vr(vO)}")
    perms(vB + 8, vW + 1, False)
    e(f"v_mfma_f32_16x16x32_bf16 {vr(vO)}, {vr(vV+4)}, {vr(vB+4)}, {vr(vO)}")
    perms(vB + 12, vW + 1, True)
    e(f"v_mfma_f32_16x16x32_bf16 {vr(vO)}, {vr(vV+8)}, {vr(vB+8)}, {vr(vO)}")
    e(f"""
    v_fma_f32 v{vLs}, v{vLs}, v{vAl}, v{vPp}
    v_add_f32 v{vPp+1}, v{vPp+1}, v{vPp+2}
    v_mfma_f32_16x16x32_bf16 {vr(vO)}, {vr(vV+12)}, {vr(vB+12)}, {vr(vO)}
    v_add_f32 v{vLs}, v{vLs}, v{vPp+3}
    v_add_f32 v{vLs}, v{vLs}, v{vPp+1}
    s_cmp_ge_u32 s{sTc}, s{sLanded}
    s_cbranch_scc1 L_loop
    s_cmp_lt_u32 s{sN2}, 2
    s_cbranch_scc1 L_cons2
    s_branch L_loop
    """)
    e(f"""
    L_dyn:
    s_bitcmp1_b32 s{sTi}, 0
    s_cbranch_scc1 L_dyn1
    v_readfirstlane_b32 s{sTk}, v{vTk0}
    s_branch L_dyn2
    L_dyn1:
    v_readfirstlane_b32 s{sTk}, v{vTk1}
    L_dyn2:
    s_nop 3
    s_cmp_ge_u32 s{sTk}, {NT}
    s_cbranch_scc1 L_nomore
    s_lshl_b32 s{sOff}, s{sTk}, 14
    s_add_u32 s{sOff}, s{sOff}, s{sDyn}
    s_branch L_issue
    L_nomore:
    s_mov_b32 s{sMode}, 1
    L_drain:
    s_cmp_ge_u32 s{sTc}, s{sTi}
    s_cbranch_scc1 L_done
    s_cmp_lt_u32 s{sTc}, s{sLanded}
    s_cbranch_scc1 L_cons1
    s_waitcnt vmcnt(0)
    s_mov_b32 s{sLanded}, s{sTi}
    s_branch L_cons1
    """)
    e(f"""
    L_qwait:
    ds_read_b32 v{vT}, v{vFl}
    s_add_u32 s{sSpin}, s{sSpin}, 1
    s_cmp_ge_u32 s{sSpin}, {1 << 20}
    s_cbranch_scc1 L_end
    s_waitcnt lgkmcnt(0)
    v_readfirstlane_b32 s{sQ}, v{vT}
    s_nop 3
    s_cmp_eq_u32 s{sQ}, 0
    s_cbranch_scc1 L_loop
    """)
    for j in range(4):
        e(f"ds_read_b128 {vr(vQ+4*j)}, v{vQa} offset:{j*64}")
    e("s_waitcnt lgkmcnt(0)")
    e("s_branch L_cons1")

    def flush(mat):
        e(f"""
        s_nop 7
        ds_write_b128 v{vMOa}, {vr(vO)} offset:{mat*4096}
        ds_write_b64 v{vMLa}, v[{vM}:{vM+1}] offset:{mat*2048}
        v_mov_b32 v{vT}, 1
        s_waitcnt lgkmcnt(0)
        s_mov_b64 exec, 1
        ds_add_u32 v{vFl}, v{vT} offset:{4+4*mat}
        s_mov_b64 exec, -1
        """)
    e("L_switch:")
    flush(0)
    for j in range(4):
        e(f"ds_read_b128 {vr(vQ+4*j)}, v{vQa} offset:{512+j*64}")
    e(f"""
    v_mov_b32 v{vM}, 0xff800000
    v_mov_b32 v{vLs}, 0
    v_mov_b32 v{vO}, 0
    v_mov_b32 v{vO+1}, 0
    v_mov_b32 v{vO+2}, 0
    v_mov_b32 v{vO+3}, 0
    s_waitcnt lgkmcnt(0)
    s_branch L_body
    L_done:
    """)
    flush(1)
    if cfg.stamps:
        e(f"""
        s_memrealtime s[{sStamp+2}:{sStamp+3}]
        s_waitcnt lgkmcnt(0)
        v_mov_b32 v{vS}, s{sStamp+2}
        v_mov_b32 v{vS+1}, s{sStamp+3}
        v_mov_b32 v{vS+2}, s{sTi}
        v_mov_b32 v{vS+3}, 0
        s_lshl_b32 s{sT0}, s2, 2
        s_add_u32 s{sT0}, s{sT0}, s{sWave}
        s_lshl_b32 s{sT0}, s{sT0}, 4
        s_add_u32 s{sT0}, s{sT0}, 0x10100000
        v_mov_b32 v{vT}, s{sT0}
        s_mov_b64 exec, 1
        global_store_dwordx4 v{vT}, {vr(vS)}, s[{sWs}:{sWs+1}]
        """)
    e("s_endpgm")

    vX = 20
    vAo = 38
    vAcc = 44
    vAcc2 = 48
    vE = 52
    vWq = 60
    vWo = 60
    vWo2 = 124
    vGa = 188
    vGm = 220
    vH1p, vMLp, vH1g, vMLg, vH2p, vH2g, vWoO, vMOr, vMLr, vFs = range(224, 234)
    NV = 234
    e(f"""
    L_service:
    s_setprio 3
    v_mov_b32 v{vFs}, {L_FL}
    v_mov_b32 v{vT}, 0
    v_mov_b32 v{vT+1}, 0
    v_mov_b32 v{vT+2}, 0
    v_mov_b32 v{vT+3}, 0
    ds_write_b128 v{vFs}, {vr(vT)}
    """)
    npre = 0
    if cfg.codepf:
        e(f"""
        s_getpc_b64 s[{sPc}:{sPc+1}]
        L_pc:
        s_sub_u32 s{sPc}, s{sPc}, L_pc-{NAME}_kernel
        s_subb_u32 s{sPc+1}, s{sPc+1}, 0
        v_lshlrev_b32 v{vAo}, 6, v{vL}
        v_add_u32 v{vAo+1}, 4096, v{vAo}
        v_add_u32 v{vAo+5}, 8192, v{vAo}
        v_min_u32 v{vAo+1}, L_codeend-{NAME}_kernel-4, v{vAo+1}
        v_min_u32 v{vAo+5}, L_codeend-{NAME}_kernel-4, v{vAo+5}
        global_load_dword v{vH1p}, v{vAo}, s[{sPc}:{sPc+1}]
        global_load_dword v{vMLp}, v{vAo+1}, s[{sPc}:{sPc+1}]
        global_load_dword v{vH1g}, v{vAo+5}, s[{sPc}:{sPc+1}]
        """)
        npre = 2
    e(f"""
    v_lshrrev_b32 v{vT+6}, 3, v{vL}
    v_and_b32 v{vT+7}, 7, v{vL}
    s_and_b32 s{sT0}, s{sJ}, 1
    s_mul_i32 s{sT0}, s{sT0}, 288
    v_mul_u32_u24 v{vAo+2}, 36, v{vT+6}
    v_add_u32 v{vAo+2}, s{sT0}, v{vAo+2}
    v_lshlrev_b32 v{vAo+3}, 13, v{vAo+2}
    v_lshlrev_b32 v{vAo+2}, 1, v{vAo+2}
    v_lshl_add_u32 v{vAo+3}, v{vT+7}, 4, v{vAo+3}
    s_bfe_u32 s{sT0}, s{sJ}, 0x20001
    s_lshl_b32 s{sT0}, s{sT0}, 7
    s_lshl_b32 s{sT1}, s{sH}, 9
    s_add_u32 s{sT0}, s{sT0}, s{sT1}
    v_add_u32 v{vAo+3}, s{sT0}, v{vAo+3}
    s_mov_b32 s{rK+2}, 4718592
    s_mov_b32 s{rK+3}, 0x20000
    s_mov_b32 s{rV+2}, 1152
    s_mov_b32 s{rV+3}, 0x20000
    s_mov_b32 s{sI}, 0
    s_lshl_b32 s{sT0}, s{sH}, 2
    s_add_u32 s{sT0}, s{sT0}, s{sJ}
    s_lshl_b32 s{sT0}, s{sT0}, 8
    s_add_u32 s{sT0}, s{sT0}, {WS_CNT}
    s_cmp_lt_u32 s{sJ}, 4
    s_cselect_b32 s{sT0}, s{sT0}, {WS_SZ:#x}
    v_mov_b32 v{vAo+4}, s{sT0}
    s_mov_b32 s{rWS+2}, {WS_SZ:#x}
    s_mov_b32 s{rWS+3}, 0x20000
    s_cmp_ge_u32 s{sJ}, 8
    s_waitcnt lgkmcnt(0)
    s_cselect_b32 s{rV}, s{sBx}, s{sAx}
    s_cselect_b32 s{rV+1}, s{sBx+1}, s{sAx+1}
    s_cselect_b32 s{rK}, s{sBwq}, s{sAwq}
    s_cselect_b32 s{rK+1}, s{sBwq+1}, s{sAwq+1}
    s_mov_b32 s{rWS}, s{sWs}
    s_mov_b32 s{rWS+1}, s{sWs+1}
    s_load_dwordx2 s[{sE}:{sE+1}], s[{sWs}:{sWs+1}], 0
    """)
    e(f"""
    s_mov_b64 exec, 1
    buffer_store_dword v{vT}, v{vAo+4}, {srd(rWS)}, 0 offen sc1
    s_mov_b64 exec, -1
    """)
    for t in range(4):
        e(f"buffer_load_dwordx4 {vr(vX+4*t)}, v{vAo+2}, {srd(rV)}, 0 offen offset:{16*t}")
    e(f"buffer_load_dwordx2 v[{vX+16}:{vX+17}], v{vAo+2}, {srd(rV)}, 0 offen offset:64")
    for i in range(36):
        e(f"buffer_load_dwordx4 {vr(vWq+4*i)}, v{vAo+3}, {srd(rK)}, s{sI} offen {cfg.wpol}")
        if i < 35:
            e(f"s_add_u32 s{sI}, s{sI}, 8192")
    e("s_barrier")
    selectors()
    e("s_waitcnt vmcnt(36)")
    perms(vE, vX, False)
    for i in range(36):
        if i + 1 < 36:
            perms(vE + 4 * ((i + 1) & 1), vX + (i + 1) // 2, (i + 1) & 1)
        e(f"s_waitcnt vmcnt({35-i})")
        if i == 35:
            e("s_nop 0")
        c = "0" if i == 0 else vr(vAcc)
        e(f"v_mfma_f32_16x16x32_bf16 {vr(vAcc)}, {vr(vE+4*(i&1))}, {vr(vWq+4*i)}, {c}")
    e(f"""
    s_waitcnt vmcnt(0) lgkmcnt(0)
    s_add_u32 s{sTagA}, s{sE}, 1
    s_add_u32 s{sTagB}, s{sE+1}, 0x9e3779b9
    v_and_b32 v{vT+7}, 7, v{vL}
    v_lshlrev_b32 v{vAo}, 6, v{vT+7}
    v_lshl_add_u32 v{vAo}, v{vG}, 5, v{vAo}
    s_lshl_b32 s{sT0}, s2, 9
    s_add_u32 s{sT0}, s{sT0}, {WS_QM}
    v_add_u32 v{vAo}, s{sT0}, v{vAo}
    v_mov_b32 v{vE+1}, s{sTagA}
    v_mov_b32 v{vE+3}, s{sTagB}
    v_mov_b32 v{vE+5}, s{sTagA}
    v_mov_b32 v{vE+7}, s{sTagB}
    """)
    for r in range(4):
        e(f"v_permlane32_swap_b32 v{vAcc+r}, v{vAcc2+r}")
    e("s_nop 1")
    for r in range(4):
        e(f"v_add_f32_dpp v{vE+2*r}, v{vAcc2+r}, v{vAcc+r} row_ror:8 row_mask:0xf bank_mask:0xf")
    e(f"""
    s_mov_b64 exec, 0x00ff00ff
    buffer_store_dwordx4 {vr(vE)}, v{vAo}, {srd(rWS)}, 0 offen sc1
    buffer_store_dwordx4 {vr(vE+4)}, v{vAo}, {srd(rWS)}, 0 offen offset:16 sc1
    s_mov_b64 exec, -1
    """)
    stamp(1)

    def poll(label, loads, regs, code):
        e(f"s_mov_b32 s{sSpin}, 0")
        e(f"{label}:")
        for ins in loads:
            e(ins)
        e(f"""
        s_add_u32 s{sSpin}, s{sSpin}, 1
        s_mov_b32 s{sT0}, {code}
        s_cmp_ge_u32 s{sSpin}, {cfg.spin}
        s_cbranch_scc1 L_fail
        """)
        n = len(regs)
        for k, r in enumerate(regs):
            e(f"s_waitcnt vmcnt({n-1-k})")
            e(f"v_cmpx_eq_u32 vcc, s{sTagA}, v{r+1}")
            e(f"v_cmpx_eq_u32 vcc, s{sTagB}, v{r+3}")
        e(f"""
        s_nop 3
        s_cmp_eq_u64 exec, -1
        s_mov_b64 exec, -1
        s_cbranch_scc0 {label}
        """)

    e(f"""
    s_lshl_b32 s{sT0}, s{sH}, 13
    s_add_u32 s{sT0}, s{sT0}, {WS_QM}
    v_lshlrev_b32 v{vAo+1}, 4, v{vL}
    v_add_u32 v{vAo+1}, s{sT0}, v{vAo+1}
    s_mov_b32 s{sI}, 4096
    """)
    poll("L_pq",
         [f"buffer_load_dwordx4 {vr(vGa+4*k)}, v{vAo+1}, {srd(rWS)}, {'0' if k < 4 else 's%d' % sI} offen offset:{(k&3)*1024} sc1" for k in range(8)],
         [vGa + 4 * k for k in range(8)], 1)
    e(f"""
    v_lshlrev_b32 v{vAo}, 2, v{vL}
    v_add_u32 v{vAo}, {L_Q}, v{vAo}
    """)
    for k in range(0, 8, 2):
        e(f"v_permlane32_swap_b32 v{vGa+4*k}, v{vGa+4*k+4}")
        e(f"v_permlane32_swap_b32 v{vGa+4*k+2}, v{vGa+4*k+6}")
    for k in range(0, 8, 2):
        e(f"v_add_f32 v{vGa+4*k}, v{vGa+4*k}, v{vGa+4*k+4}")
        e(f"v_add_f32 v{vGa+4*k+2}, v{vGa+4*k+2}, v{vGa+4*k+6}")
    for k in range(0, 8, 2):
        e(f"v_cvt_pk_bf16_f32 v{vGa+4*k}, v{vGa+4*k}, v{vGa+4*k+2}")
    for k in range(0, 8, 2):
        e(f"ds_write_b32 v{vAo}, v{vGa+4*k} offset:{k*128}")
    e(f"""
    v_mov_b32 v{vT}, 1
    s_waitcnt lgkmcnt(0)
    ds_write_b32 v{vFs}, v{vT}
    """)
    stamp(2)
    e(f"""
    s_lshr_b32 s{sRbk}, s{sJ}, 2
    s_and_b32 s{sCb}, s{sJ}, 3
    v_and_b32 v{vT}, 1, v{vG}
    v_lshrrev_b32 v{vT+1}, 1, v{vG}
    v_and_b32 v{vT+2}, 7, v{vL}
    v_bfe_u32 v{vT+3}, v{vL}, 3, 1
    """)
    e(f"""
    v_lshl_add_u32 v{vT+4}, v{vT}, 4, v{vT+1}
    s_lshl_b32 s{sT0}, s{sH}, 2
    s_add_u32 s{sT0}, s{sT0}, s{sRbk}
    s_lshl_b32 s{sT1}, s{sT0}, 6
    v_add_u32 v{vT+4}, s{sT1}, v{vT+4}
    v_mul_u32_u24 v{vT+4}, 1152, v{vT+4}
    v_lshl_add_u32 v{vT+4}, v{vP}, 4, v{vT+4}
    s_lshl_b32 s{sT1}, s{sCb}, 8
    v_add_u32 v{vWoO}, s{sT1}, v{vT+4}
    """)
    e(f"""
    s_lshl_b32 s{sT1}, s{sT0}, 13
    s_add_u32 s{sT1}, s{sT1}, {WS_H1}
    v_lshlrev_b32 v{vT+4}, 9, v{vP}
    v_lshl_add_u32 v{vT+4}, v{vG}, 4, v{vT+4}
    v_add_u32 v{vH1g}, s{sT1}, v{vT+4}
    s_lshr_b32 s{sT1}, s{sT0}, 1
    s_lshl_b32 s{sT1}, s{sT1}, 8
    s_add_u32 s{sT1}, s{sT1}, {WS_ML}
    v_lshlrev_b32 v{vT+4}, 4, v{vP}
    v_add_u32 v{vMLg}, s{sT1}, v{vT+4}
    """)
    e(f"""
    s_lshl_b32 s{sT0}, s{sT0}, 7
    s_lshl_b32 s{sT1}, s{sCb}, 16
    s_add_u32 s{sT0}, s{sT0}, s{sT1}
    s_add_u32 s{sT0}, s{sT0}, {WS_H2}
    v_lshrrev_b32 v{vT+4}, 1, v{vP}
    v_lshlrev_b32 v{vT+4}, 13, v{vT+4}
    v_and_b32 v{vT+5}, 1, v{vP}
    v_lshl_add_u32 v{vT+5}, v{vT+5}, 1, v{vT}
    v_lshl_add_u32 v{vT+5}, v{vT+5}, 1, v{vT+1}
    v_lshl_add_u32 v{vT+4}, v{vT+5}, 4, v{vT+4}
    v_add_u32 v{vH2p}, s{sT0}, v{vT+4}
    """)
    e(f"""
    v_lshl_add_u32 v{vT+4}, v{vT+3}, 1, v{vT+1}
    v_lshlrev_b32 v{vT+4}, 13, v{vT+4}
    v_lshl_add_u32 v{vT+5}, v{vT}, 3, v{vT+2}
    v_lshl_add_u32 v{vT+4}, v{vT+5}, 5, v{vT+4}
    s_lshl_b32 s{sT0}, s{sH}, 15
    s_lshl_b32 s{sT1}, s{sJ}, 9
    s_add_u32 s{sT0}, s{sT0}, s{sT1}
    s_add_u32 s{sT0}, s{sT0}, {WS_H1}
    v_add_u32 v{vH1p}, s{sT0}, v{vT+4}
    s_lshl_b32 s{sT0}, s{sH}, 9
    s_lshl_b32 s{sT1}, s{sJ}, 4
    s_add_u32 s{sT0}, s{sT0}, s{sT1}
    s_add_u32 s{sT0}, s{sT0}, {WS_ML}
    v_lshlrev_b32 v{vT+4}, 8, v{vT+3}
    v_add_u32 v{vMLp}, s{sT0}, v{vT+4}
    s_lshl_b32 s{sT0}, s2, 13
    s_add_u32 s{sT0}, s{sT0}, {WS_H2}
    v_lshlrev_b32 v{vT+4}, 4, v{vL}
    v_add_u32 v{vH2g}, s{sT0}, v{vT+4}
    v_add_u32 v{vMOr}, {L_MO}, v{vT+4}
    v_lshlrev_b32 v{vT+4}, 3, v{vL}
    v_add_u32 v{vMLr}, {L_MML}, v{vT+4}
    s_mov_b32 s{rK}, s{sAwo}
    s_mov_b32 s{rK+1}, s{sAwo+1}
    s_mov_b32 s{rO}, s{sOut}
    s_mov_b32 s{rO+1}, s{sOut+1}
    s_mov_b32 s{rO+2}, 2304
    s_mov_b32 s{rO+3}, 0x20000
    s_mov_b32 s{sMat}, 0
    s_mov_b32 s{sMsk}, 0
    s_mov_b32 s{sMsk+1}, -1
    L_mat:
    """)
    def rowconst(i):
        k, v = i >> 1, i & 1
        return 32 * (k >> 2) + 8 * v + ((2 * k) & 7)
    for i in range(16):
        e(f"s_mov_b32 s{sI}, {rowconst(i)*1152}")
        e(f"buffer_load_dwordx4 {vr(vWo+4*i)}, v{vWoO}, {srd(rK)}, s{sI} offen {cfg.wpol}")
    e(f"""
    s_cmp_eq_u32 s{sCb}, 3
    s_cbranch_scc0 L_now2
    s_mov_b32 exec_lo, 0x00ff00ff
    s_mov_b32 exec_hi, 0x00ff00ff
    """)
    for i in range(16):
        e(f"s_mov_b32 s{sI}, {rowconst(i)*1152}")
        e(f"buffer_load_dwordx4 {vr(vWo2+4*i)}, v{vWoO}, {srd(rK)}, s{sI} offen offset:256 {cfg.wpol}")
    e(f"""
    s_mov_b64 exec, -1
    L_now2:
    s_mov_b32 s{sSpin}, 0
    L_wcnt:
    ds_read_b32 v{vT}, v{vFs} offset:4
    s_add_u32 s{sSpin}, s{sSpin}, 1
    s_mov_b32 s{sT0}, 2
    s_cmp_ge_u32 s{sSpin}, {1 << 20}
    s_cbranch_scc1 L_fail
    s_waitcnt lgkmcnt(0)
    v_readfirstlane_b32 s{sT1}, v{vT}
    s_nop 3
    s_cmp_eq_u32 s{sT1}, 4
    s_cbranch_scc1 L_merge
    s_sleep 1
    s_branch L_wcnt
    L_merge:
    """)
    if cfg.stamps:
        e(f"""
        s_cmp_eq_u32 s{sMat}, 0
        s_cbranch_scc1 L_st3
        s_memrealtime s[{sStamp+10}:{sStamp+11}]
        s_branch L_st3b
        L_st3:
        s_memrealtime s[{sStamp+6}:{sStamp+7}]
        L_st3b:
        """)
    vMo = vGa
    vMl = vGa + 16
    for w in range(4):
        e(f"ds_read_b64 v[{vMl+2*w}:{vMl+2*w+1}], v{vMLr} offset:{w*512}")
    for w in range(4):
        e(f"ds_read_b128 {vr(vMo+4*w)}, v{vMOr} offset:{w*1024}")
    e(f"""
    v_mov_b32 v{vE+1}, s{sTagA}
    v_mov_b32 v{vE+3}, s{sTagB}
    v_mov_b32 v{vE+5}, s{sTagA}
    v_mov_b32 v{vE+7}, s{sTagB}
    v_mov_b32 v{vAcc+1}, s{sTagA}
    v_mov_b32 v{vAcc+3}, s{sTagB}
    s_waitcnt lgkmcnt(0)
    v_max3_f32 v{vAcc}, v{vMl}, v{vMl+2}, v{vMl+4}
    v_max_f32 v{vAcc}, v{vAcc}, v{vMl+6}
    """)
    for w in range(4):
        e(f"v_sub_f32 v{vMl+2*w}, v{vMl+2*w}, v{vAcc}")
    for w in range(4):
        e(f"v_exp_f32 v{vMl+2*w}, v{vMl+2*w}")
    e(f"s_nop 0")
    e(f"v_mul_f32 v{vAcc+2}, v{vMl}, v{vMl+1}")
    for r in range(4):
        e(f"v_mul_f32 v{vE+2*r}, v{vMl}, v{vMo+r}")
    for w in range(1, 4):
        e(f"v_fmac_f32 v{vAcc+2}, v{vMl+2*w}, v{vMl+2*w+1}")
        for r in range(4):
            e(f"v_fmac_f32 v{vE+2*r}, v{vMl+2*w}, v{vMo+4*w+r}")
    e(f"""
    buffer_store_dwordx4 {vr(vE)}, v{vH1p}, {srd(rWS)}, 0 offen sc1
    buffer_store_dwordx4 {vr(vE+4)}, v{vH1p}, {srd(rWS)}, 0 offen offset:16 sc1
    v_mov_b32 v{vT}, v{vAcc+2}
    s_nop 1
    v_permlane32_swap_b32 v{vAcc+2}, v{vT}
    v_add_f32 v{vAcc+2}, v{vAcc+2}, v{vT}
    v_mov_b32 v{vT}, v{vAcc+2}
    s_nop 1
    v_permlane16_swap_b32 v{vAcc+2}, v{vT}
    v_add_f32 v{vAcc+2}, v{vAcc+2}, v{vT}
    s_mov_b64 exec, 0x101
    buffer_store_dwordx4 {vr(vAcc)}, v{vMLp}, {srd(rWS)}, 0 offen sc1
    s_mov_b64 exec, -1
    """)
    poll("L_p1",
         [f"buffer_load_dwordx4 {vr(vGm)}, v{vMLg}, {srd(rWS)}, 0 offen sc1"] +
         [f"buffer_load_dwordx4 {vr(vGa+4*k)}, v{vH1g}, {srd(rWS)}, 0 offen offset:{k*64} sc1" for k in range(8)],
         [vGm] + [vGa + 4 * k for k in range(8)], 3)
    if cfg.stamps:
        e(f"s_memrealtime s[{sStamp+12}:{sStamp+13}]")
    def allred(op, regs):
        for sh in (8, 4, 2, 1):
            for r in regs:
                e(f"{op}_dpp v{r}, v{r}, v{r} row_ror:{sh} row_mask:0xf bank_mask:0xf")
            if len(regs) < 3:
                e(f"s_nop {2-len(regs)}")
    e(f"v_mov_b32 v{vT}, v{vGm}")
    e("s_nop 1")
    allred("v_max_f32", [vT])
    e(f"""
    v_sub_f32 v{vGm}, v{vGm}, v{vT}
    v_exp_f32 v{vGm}, v{vGm}
    s_nop 0
    v_mul_f32 v{vT}, v{vGm}, v{vGm+2}
    s_nop 1
    """)
    allred("v_add_f32", [vT])
    e(f"""
    v_rcp_f32 v{vT}, v{vT}
    s_nop 0
    v_mul_f32 v{vGm}, v{vGm}, v{vT}
    """)
    vals = [vGa + 2 * i for i in range(16)]
    for r in vals:
        e(f"v_mul_f32 v{r}, v{vGm}, v{r}")
    allred("v_add_f32", vals)
    for k in range(8):
        e(f"v_cvt_pk_bf16_f32 v{vGa+4*k}, v{vGa+4*k}, v{vGa+4*k+2}")
    def oproj(acc, wbase):
        perms(vE, vGa, False)
        for i in range(16):
            if i + 1 < 16:
                perms(vE + 4 * ((i + 1) & 1), vGa + 4 * ((i + 1) >> 1), (i + 1) & 1)
            else:
                e("s_nop 1")
            c = "0" if i == 0 else vr(acc)
            e(f"v_mfma_f32_16x16x32_bf16 {vr(acc)}, {vr(vE+4*(i&1))}, {vr(wbase+4*i)}, {c}")
    def h2store(acc, soff):
        e(f"""
        v_mov_b32 v{vX+1}, s{sTagA}
        v_mov_b32 v{vX+3}, s{sTagB}
        s_nop 6
        v_cndmask_b32 v{vX}, v{acc}, v{acc+2}, s[{sMsk}:{sMsk+1}]
        v_cndmask_b32 v{vX+2}, v{acc+1}, v{acc+3}, s[{sMsk}:{sMsk+1}]
        """)
    oproj(vAcc, vWo)
    h2store(vAcc, 0)
    e(f"""
    buffer_store_dwordx4 {vr(vX)}, v{vH2p}, {srd(rWS)}, 0 offen sc1
    s_cmp_eq_u32 s{sCb}, 3
    s_cbranch_scc0 L_no2
    """)
    oproj(vAcc2, vWo2)
    h2store(vAcc2, 0)
    e(f"""
    s_mov_b32 s{sI}, 65536
    s_mov_b32 exec_lo, 0x00ff00ff
    s_mov_b32 exec_hi, 0x00ff00ff
    buffer_store_dwordx4 {vr(vX)}, v{vH2p}, {srd(rWS)}, s{sI} offen sc1
    s_mov_b64 exec, -1
    L_no2:
    """)
    if cfg.stamps:
        e(f"s_memrealtime s[{sStamp+14}:{sStamp+15}]")
    e(f"""
    s_cmp_lt_u32 s2, 36
    s_cbranch_scc0 L_nored
    s_mov_b32 s{sI}, 4096
    """)
    poll("L_p2",
         [f"buffer_load_dwordx4 {vr(vGa+4*k)}, v{vH2g}, {srd(rWS)}, {'0' if k < 4 else 's%d' % sI} offen offset:{(k&3)*1024} sc1" for k in range(8)],
         [vGa + 4 * k for k in range(8)], 4)
    for st in (4, 2, 1):
        for k in range(st):
            e(f"v_add_f32 v{vGa+4*k}, v{vGa+4*k}, v{vGa+4*(k+st)}")
            e(f"v_add_f32 v{vGa+4*k+2}, v{vGa+4*k+2}, v{vGa+4*(k+st)+2}")
    e(f"""
    s_mul_i32 s{sT0}, s{sMat}, 1152
    s_lshl_b32 s{sT1}, s2, 5
    v_add_f32_dpp v{vGa}, v{vGa}, v{vGa} row_ror:8 row_mask:0xf bank_mask:0xf
    v_add_f32_dpp v{vGa+2}, v{vGa+2}, v{vGa+2} row_ror:8 row_mask:0xf bank_mask:0xf
    s_add_u32 s{sT0}, s{sT0}, s{sT1}
    v_mov_b32 v{vGa+1}, v{vGa}
    v_mov_b32 v{vGa+3}, v{vGa+2}
    s_nop 1
    v_permlane16_swap_b32 v{vGa}, v{vGa+1}
    v_permlane16_swap_b32 v{vGa+2}, v{vGa+3}
    v_add_f32 v{vGa}, v{vGa}, v{vGa+1}
    v_add_f32 v{vGa+2}, v{vGa+2}, v{vGa+3}
    v_mov_b32 v{vGa+1}, v{vGa}
    v_mov_b32 v{vGa+3}, v{vGa+2}
    s_nop 1
    v_permlane32_swap_b32 v{vGa}, v{vGa+1}
    v_permlane32_swap_b32 v{vGa+2}, v{vGa+3}
    v_add_f32 v{vGa}, v{vGa}, v{vGa+1}
    v_add_f32 v{vGa+2}, v{vGa+2}, v{vGa+3}
    v_lshlrev_b32 v{vT}, 2, v{vL}
    v_cvt_pk_bf16_f32 v{vGa}, v{vGa}, v{vGa+2}
    s_mov_b64 exec, 0xff
    buffer_store_dword v{vGa}, v{vT}, {srd(rO)}, s{sT0} offen
    s_mov_b64 exec, -1
    L_nored:
    s_cmp_eq_u32 s{sMat}, 1
    s_cbranch_scc1 L_fin
    """)
    stamp(4)
    e(f"""
    s_mov_b32 s{sMat}, 1
    s_mov_b32 s{rK}, s{sBwo}
    s_mov_b32 s{rK+1}, s{sBwo+1}
    v_add_u32 v{vH1p}, 0x80000, v{vH1p}
    v_add_u32 v{vH1g}, 0x80000, v{vH1g}
    v_add_u32 v{vMLp}, 0x2000, v{vMLp}
    v_add_u32 v{vMLg}, 0x2000, v{vMLg}
    v_add_u32 v{vH2p}, {36*8192}, v{vH2p}
    v_add_u32 v{vH2g}, {36*8192}, v{vH2g}
    v_add_u32 v{vMOr}, 4096, v{vMOr}
    v_add_u32 v{vMLr}, 2048, v{vMLr}
    v_add_u32 v{vFs}, 4, v{vFs}
    s_branch L_mat
    L_fin:
    s_cmp_eq_u32 s2, 0
    s_cbranch_scc0 L_fin2
    v_mov_b32 v{vT}, s{sTagA}
    v_mov_b32 v{vT+1}, s{sTagB}
    v_mov_b32 v{vT+2}, 0
    s_mov_b64 exec, 1
    buffer_store_dwordx2 v[{vT}:{vT+1}], v{vT+2}, {srd(rWS)}, 0 offen sc1
    s_mov_b64 exec, -1
    L_fin2:
    """)
    if cfg.stamps:
        e(f"""
        s_waitcnt vmcnt(0)
        s_memrealtime s[{sStamp+16}:{sStamp+17}]
        s_waitcnt lgkmcnt(0)
        s_mul_i32 s{sT0}, s2, {9*8}
        s_add_u32 s{sT0}, s{sT0}, 0x10000000
        v_mov_b32 v{vT}, s{sT0}
        s_mov_b64 exec, 1
        """)
        for i in range(9):
            e(f"""
            v_mov_b32 v{vE}, s{sStamp+2*i}
            v_mov_b32 v{vE+1}, s{sStamp+2*i+1}
            global_store_dwordx2 v{vT}, v[{vE}:{vE+1}], s[{sWs}:{sWs+1}] offset:{8*i}
            s_nop 1
            """)
    e(f"""
    s_endpgm
    L_fail:
    v_mov_b32 v{vT}, s{sT0}
    v_mov_b32 v{vT+1}, 0
    s_mov_b64 exec, 1
    global_store_dword v{vT+1}, v{vT}, s[{sDbg}:{sDbg+1}]
    L_end:
    s_endpgm
    L_codeend:
    """)
    nv = (NV + 7) // 8 * 8
    L.append('.section .rodata,"a"')
    L.append(".p2align 6")
    L.append(f".amdhsa_kernel {NAME}_kernel")
    L.append(f"  .amdhsa_next_free_vgpr {nv}")
    L.append("  .amdhsa_next_free_sgpr 96")
    L.append(f"  .amdhsa_accum_offset {min(256, nv)}")
    L.append("  .amdhsa_group_segment_fixed_size 0")
    L.append("  .amdhsa_kernarg_size 104")
    L.append("  .amdhsa_user_sgpr_count 2")
    L.append("  .amdhsa_user_sgpr_kernarg_segment_ptr 1")
    L.append("  .amdhsa_system_sgpr_workgroup_id_x 1")
    L.append("  .amdhsa_float_denorm_mode_32 3")
    L.append(".end_amdhsa_kernel")
    return "\n".join(L) + "\n"


if __name__ == "__main__":
    out = sys.argv[1]
    kw = {}
    for a in sys.argv[2:]:
        k, v = a.split("=")
        try:
            v = int(v)
        except ValueError:
            v = v.replace("+", " ")
        kw[k] = v
    open(out, "w").write(gen(Cfg(**kw)))
```

```python
import sys, math, struct

NAME = "concat_heads__sliding_block_cached__gqa_block_cached__decode"

HEADER = """; Kernarg layout for this problem (104 bytes, ptrs only, base s[0:1]):
"""


def f32bits(x):
    return struct.unpack("<I", struct.pack("<f", x))[0]


class Cfg:
    D = 4
    S = 26
    stamps = False
    codepf = True
    kvpol = "nt"
    vpol = None
    wpol = "nt"
    pad = 0
    spin = 1 << 14
    def __init__(self, **kw):
        for k, v in kw.items():
            setattr(self, k, v)


def gen(cfg):
    D, S = cfg.D, cfg.S
    NS = 4 + S
    NT = 512 - 16 * S
    L = []
    def e(s):
        for ln in s.strip("\n").split("\n"):
            L.append("    " + ln.strip() if not ln.strip().endswith(":") else ln.strip())
    WS_CNT = 0x1000
    WS_QM = 0x10000
    WS_ML = 0x30000
    WS_H1 = 0x40000
    WS_H2 = 0x140000
    WS_SZ = 0x400000
    RING = 4 * D * 8192
    L_Q = RING
    L_MO = L_Q + 1024
    L_MML = L_MO + 8192
    L_FL = L_MML + 4096
    LDS = L_FL + 64
    sAx, sAk, sAv, sAwq, sAwo, sBx, sBk, sBv = 4, 6, 8, 10, 12, 14, 16, 18
    sBwq, sBwo, sOut, sDbg, sWs, sE = 20, 22, 24, 26, 28, 30
    sTagA, sTagB = 32, 33
    sT0, sT1 = 34, 35
    rWS, rK, rV, rO = 36, 40, 44, 48
    sH, sJ, sWave, sC = 52, 53, 54, 55
    sTi, sTc, sOff, sIrel, sCrel, sRB, sLanded, sMode, sQ, sTk, sDyn, sBst, sCnt, sSpin, sN2 = range(56, 71)
    sMat, sI, sCb, sRbk = 56, 57, 58, 59
    sMsk = 60
    sPc = 62
    sStamp = 72
    def srd(r): return f"s[{r}:{r+3}]"
    def vr(a, n=4): return f"v[{a}:{a+n-1}]"
    def stamp(i):
        if cfg.stamps:
            e(f"s_memrealtime s[{sStamp+2*i}:{sStamp+2*i+1}]")
    NSTAMP = 10

    L.append(HEADER.rstrip("\n"))
    L.append(f"; @launch grid=(256,1,1) block=(320,1,1) lds={LDS}")
    L.append('.amdgcn_target "amdgcn-amd-amdhsa--gfx950"')
    L.append(".text")
    L.append(f".globl {NAME}_kernel")
    L.append(".p2align 8")
    L.append(f".type {NAME}_kernel,@function")
    L.append(f"{NAME}_kernel:")
    e(f"""
    s_cmp_ge_u32 s2, 256
    s_cbranch_scc1 L_end
    s_load_dwordx16 s[4:19], s[0:1], 0
    s_load_dwordx8 s[20:27], s[0:1], 64
    s_load_dwordx2 s[28:29], s[0:1], 96
    """)
    stamp(0)
    if cfg.pad and not cfg.stamps:
        e(f"s_memrealtime s[{sStamp}:{sStamp+1}]")
    vL, vG, vP = 0, 1, 2
    vSelE, vSelO = 4, 8
    vT = 12
    e(f"""
    v_lshrrev_b32 v{vT}, 6, v0
    v_and_b32 v{vL}, 63, v0
    v_readfirstlane_b32 s{sWave}, v{vT}
    v_lshrrev_b32 v{vG}, 4, v{vL}
    v_and_b32 v{vP}, 15, v{vL}
    s_lshr_b32 s{sH}, s2, 4
    s_and_b32 s{sJ}, s2, 15
    s_cmp_eq_u32 s{sWave}, 4
    s_cbranch_scc1 L_service
    """)

    def selectors():
        e(f"""
        v_and_b32 v{vT}, 1, v{vL}
        v_bfe_u32 v{vT+1}, v{vL}, 1, 2
        v_mov_b32 v{vT+2}, 0x0c0c0100
        v_mov_b32 v{vT+3}, 0x01000c0c
        v_cmp_eq_u32 vcc, 1, v{vT}
        v_mov_b32 v{vT+4}, 0x0c0c0302
        v_mov_b32 v{vT+5}, 0x03020c0c
        v_cndmask_b32 v{vT+2}, v{vT+2}, v{vT+3}, vcc
        v_cndmask_b32 v{vT+4}, v{vT+4}, v{vT+5}, vcc
        v_mov_b32 v{vT+3}, 0x0c0c0c0c
        """)
        for j in range(4):
            e(f"""
            v_cmp_eq_u32 vcc, {j}, v{vT+1}
            s_nop 1
            v_cndmask_b32 v{vSelE+j}, v{vT+3}, v{vT+2}, vcc
            v_cndmask_b32 v{vSelO+j}, v{vT+3}, v{vT+4}, vcc
            """)

    def ws_srd():
        e(f"""
        s_mov_b32 s{rWS}, s{sWs}
        s_mov_b32 s{rWS+1}, s{sWs+1}
        s_mov_b32 s{rWS+2}, {WS_SZ:#x}
        s_mov_b32 s{rWS+3}, 0x20000
        """)

    vKg = 20
    vVg = 24
    vKl = 25
    vVl = 29
    vQa = 30
    vMOa, vMLa, vFl = 31, 32, 33
    vTk0, vTk1, vAt = 34, 35, 36
    vM, vLs = 38, 39
    vA = 40
    vAl, vMn, vU, vW = 45, 46, 47, 48
    vS = 52
    vO = 56
    vPp = 60
    vQ = 64
    vK = 80
    vV = 96
    vB = 112
    e(f"""
    v_xor_b32 v{vT}, v{vP}, v{vG}
    v_lshlrev_b32 v{vT+1}, 8, v{vG}
    """)
    for i in range(4):
        e(f"""
        v_xor_b32 v{vT+2}, {4*i}, v{vT}
        v_lshl_add_u32 v{vKg+i}, v{vT+2}, 4, v{vT+1}
        """)
    e(f"""
    v_lshlrev_b32 v{vVg}, 4, v{vL}
    s_mul_i32 s{sRB}, s{sWave}, {D*8192}
    s_lshl_b32 s{sT0}, s{sH}, 23
    s_lshl_b32 s{sT1}, s{sWave}, 12
    s_add_u32 s{sT0}, s{sT0}, s{sT1}
    s_lshl_b32 s{sOff}, s{sJ}, 16
    s_add_u32 s{sOff}, s{sOff}, {28672*256}
    s_add_u32 s{sOff}, s{sOff}, s{sT0}
    s_mul_i32 s{sBst}, s{sJ}, {S*64*256}
    s_add_u32 s{sBst}, s{sBst}, s{sT0}
    s_add_u32 s{sDyn}, s{sT0}, {64*S*4096}
    s_lshl_b32 s{sCnt}, s{sH}, 2
    s_add_u32 s{sCnt}, s{sCnt}, s{sWave}
    s_lshl_b32 s{sCnt}, s{sCnt}, 8
    s_add_u32 s{sCnt}, s{sCnt}, {WS_CNT}
    s_mov_b32 s{sTi}, 0
    s_mov_b32 s{sTc}, 0
    s_mov_b32 s{sIrel}, 0
    s_mov_b32 s{sCrel}, 0
    s_mov_b32 s{sMode}, 0
    s_mov_b32 s{sQ}, 0
    s_mov_b32 s{sSpin}, 0
    s_mov_b32 s{rK+2}, 0x8000000
    s_mov_b32 s{rK+3}, 0x20000
    s_mov_b32 s{rV+2}, 0x8000000
    s_mov_b32 s{rV+3}, 0x20000
    s_waitcnt lgkmcnt(0)
    s_mov_b32 s{rK}, s{sAk}
    s_mov_b32 s{rK+1}, s{sAk+1}
    s_mov_b32 s{rV}, s{sAv}
    s_mov_b32 s{rV+1}, s{sAv+1}
    """)
    ws_srd()
    e("s_barrier")

    def issue_loads():
        e(f"""
        s_add_u32 m0, s{sRB}, s{sIrel}
        s_add_u32 s{sIrel}, s{sIrel}, 8192
        """)
        for i in range(4):
            e(f"buffer_load_dwordx4 v{vKg+i}, {srd(rK)}, s{sOff} offen offset:{i*1024} {cfg.kvpol} lds")
        e(f"""
        s_add_u32 m0, m0, 4096
        s_cmp_eq_u32 s{sIrel}, {D*8192}
        """)
        for i in range(4):
            e(f"buffer_load_dwordx4 v{vVg}, {srd(rV)}, s{sOff} offen offset:{i*1024} {cfg.kvpol if cfg.vpol is None else cfg.vpol} lds")
        e(f"""
        s_cselect_b32 s{sIrel}, 0, s{sIrel}
        s_add_u32 s{sOff}, s{sOff}, 16384
        """)

    def ticket_req(reg):
        e(f"""
        s_mov_b64 exec, 1
        v_mov_b32 v{reg}, 1
        v_mov_b32 v{vAt}, s{sT0}
        buffer_atomic_add v{reg}, v{vAt}, {srd(rWS)}, 0 offen sc0
        s_mov_b64 exec, -1
        """)

    e(f"s_mov_b32 s{sT0}, {WS_SZ:#x}")
    issue_loads(); ticket_req(vTk0)
    issue_loads(); ticket_req(vTk1)
    e(f"s_mov_b32 s{sTi}, 2")
    selectors()
    e(f"""
    v_lshlrev_b32 v{vT}, 8, v{vP}
    v_add_u32 v{vT}, s{sRB}, v{vT}
    v_xor_b32 v{vT+1}, v{vP}, v{vG}
    """)
    for j in range(4):
        e(f"""
        v_xor_b32 v{vT+2}, {4*j}, v{vT+1}
        v_lshl_add_u32 v{vKl+j}, v{vT+2}, 4, v{vT}
        """)
    e(f"""
    v_lshlrev_b32 v{vT}, 10, v{vG}
    v_lshl_add_u32 v{vT}, v{vP}, 4, v{vT}
    s_add_u32 s{sT0}, s{sRB}, 4096
    v_add_u32 v{vVl}, s{sT0}, v{vT}
    v_lshrrev_b32 v{vT}, 3, v{vP}
    v_lshlrev_b32 v{vT}, 8, v{vT}
    v_lshl_add_u32 v{vT}, v{vG}, 4, v{vT}
    v_add_u32 v{vQa}, {L_Q}, v{vT}
    s_lshl_b32 s{sT0}, s{sWave}, 10
    s_add_u32 s{sT0}, s{sT0}, {L_MO}
    v_lshlrev_b32 v{vT}, 4, v{vL}
    v_add_u32 v{vMOa}, s{sT0}, v{vT}
    s_lshl_b32 s{sT0}, s{sWave}, 9
    s_add_u32 s{sT0}, s{sT0}, {L_MML}
    v_lshlrev_b32 v{vT}, 3, v{vL}
    v_add_u32 v{vMLa}, s{sT0}, v{vT}
    v_mov_b32 v{vFl}, {L_FL}
    s_mov_b32 s{sC}, {f32bits(math.log2(math.e)/math.sqrt(128.0)):#x}
    v_mov_b32 v{vM}, 0xff800000
    v_mov_b32 v{vLs}, 0
    v_mov_b32 v{vO}, 0
    v_mov_b32 v{vO+1}, 0
    v_mov_b32 v{vO+2}, 0
    v_mov_b32 v{vO+3}, 0
    """)
    e(f"""
    L_loop:
    s_cmp_lg_u32 s{sMode}, 0
    s_cbranch_scc1 L_drain
    s_waitcnt vmcnt(9)
    s_sub_u32 s{sLanded}, s{sTi}, 1
    s_sub_u32 s{sT0}, s{sTi}, s{sTc}
    s_cmp_ge_u32 s{sT0}, {D}
    s_cbranch_scc1 L_cons
    s_cmp_ge_u32 s{sTi}, {NS}
    s_cbranch_scc1 L_dyn
    s_cmp_eq_u32 s{sTi}, 4
    s_cbranch_scc0 L_issue
    s_mov_b32 s{rK}, s{sBk}
    s_mov_b32 s{rK+1}, s{sBk+1}
    s_mov_b32 s{rV}, s{sBv}
    s_mov_b32 s{rV+1}, s{sBv+1}
    s_mov_b32 s{sOff}, s{sBst}
    L_issue:
    """)
    issue_loads()
    e(f"""
    s_cmp_ge_u32 s{sTi}, {NS-2}
    s_cselect_b32 s{sT0}, s{sCnt}, {WS_SZ:#x}
    s_bitcmp1_b32 s{sTi}, 0
    s_cbranch_scc1 L_tk1
    """)
    ticket_req(vTk0)
    e("s_branch L_tkd")
    e("L_tk1:")
    ticket_req(vTk1)
    e(f"""
    L_tkd:
    s_add_u32 s{sTi}, s{sTi}, 1
    L_cons:
    s_cmp_eq_u32 s{sQ}, 0
    s_cbranch_scc1 L_qwait
    L_cons1:
    s_mov_b32 s{sN2}, 0
    L_cons2:
    s_cmp_eq_u32 s{sTc}, 4
    s_cbranch_scc1 L_switch
    L_body:
    """)
    for j in range(4):
        e(f"v_add_u32 v{vA+j}, s{sCrel}, v{vKl+j}")
    e(f"v_add_u32 v{vA+4}, s{sCrel}, v{vVl}")
    for j in range(4):
        e(f"ds_read_b128 {vr(vK+4*j)}, v{vA+j}")
    for r in range(4):
        e(f"ds_read_b128 {vr(vV+4*r)}, v{vA+4} offset:{r*256}")
    e(f"""
    s_add_u32 s{sCrel}, s{sCrel}, 8192
    s_cmp_eq_u32 s{sCrel}, {D*8192}
    s_cselect_b32 s{sCrel}, 0, s{sCrel}
    s_add_u32 s{sTc}, s{sTc}, 1
    s_add_u32 s{sN2}, s{sN2}, 1
    """)
    for j in range(4):
        e(f"s_waitcnt lgkmcnt({7-j})")
        c = "0" if j == 0 else vr(vS)
        e(f"v_mfma_f32_16x16x32_bf16 {vr(vS)}, {vr(vK+4*j)}, {vr(vQ+4*j)}, {c}")
    e(f"""
    s_nop 7
    v_max3_f32 v{vT}, v{vS}, v{vS+1}, v{vS+2}
    v_max_f32 v{vT}, v{vT}, v{vS+3}
    v_mov_b32 v{vU}, v{vT}
    s_nop 1
    v_permlane32_swap_b32 v{vT}, v{vU}
    v_max_f32 v{vT}, v{vT}, v{vU}
    v_mov_b32 v{vU}, v{vT}
    s_nop 1
    v_permlane16_swap_b32 v{vT}, v{vU}
    v_max_f32 v{vT}, v{vT}, v{vU}
    v_mul_f32 v{vT}, s{sC}, v{vT}
    v_max_f32 v{vMn}, v{vM}, v{vT}
    v_sub_f32 v{vAl}, v{vM}, v{vMn}
    """)
    for r in range(4):
        e(f"v_fma_f32 v{vPp+r}, v{vS+r}, s{sC}, -v{vMn}")
    e(f"v_exp_f32 v{vAl}, v{vAl}")
    for r in range(4):
        e(f"v_exp_f32 v{vPp+r}, v{vPp+r}")
    e(f"v_mov_b32 v{vM}, v{vMn}")
    e(f"v_cvt_pk_bf16_f32 v{vW}, v{vPp}, v{vPp+1}")
    e(f"v_cvt_pk_bf16_f32 v{vW+1}, v{vPp+2}, v{vPp+3}")
    for r in range(4):
        e(f"v_mul_f32 v{vO+r}, v{vAl}, v{vO+r}")
    def perms(dst, src, odd):
        for j in range(4):
            e(f"v_perm_b32 v{dst+j}, v{src}, v{src}, v{(vSelO if odd else vSelE)+j}")
    perms(vB, vW, False)
    perms(vB + 4, vW, True)
    e("s_waitcnt lgkmcnt(0)")
    e(f"v_mfma_f32_16x16x32_bf16 {vr(vO)}, {vr(vV)}, {vr(vB)}, {vr(vO)}")
    perms(vB + 8, vW + 1, False)
    e(f"v_mfma_f32_16x16x32_bf16 {vr(vO)}, {vr(vV+4)}, {vr(vB+4)}, {vr(vO)}")
    perms(vB + 12, vW + 1, True)
    e(f"v_mfma_f32_16x16x32_bf16 {vr(vO)}, {vr(vV+8)}, {vr(vB+8)}, {vr(vO)}")
    e(f"""
    v_fma_f32 v{vLs}, v{vLs}, v{vAl}, v{vPp}
    v_add_f32 v{vPp+1}, v{vPp+1}, v{vPp+2}
    v_mfma_f32_16x16x32_bf16 {vr(vO)}, {vr(vV+12)}, {vr(vB+12)}, {vr(vO)}
    v_add_f32 v{vLs}, v{vLs}, v{vPp+3}
    v_add_f32 v{vLs}, v{vLs}, v{vPp+1}
    s_cmp_ge_u32 s{sTc}, s{sLanded}
    s_cbranch_scc1 L_loop
    s_cmp_lt_u32 s{sN2}, 2
    s_cbranch_scc1 L_cons2
    s_branch L_loop
    """)
    e(f"""
    L_dyn:
    s_bitcmp1_b32 s{sTi}, 0
    s_cbranch_scc1 L_dyn1
    v_readfirstlane_b32 s{sTk}, v{vTk0}
    s_branch L_dyn2
    L_dyn1:
    v_readfirstlane_b32 s{sTk}, v{vTk1}
    L_dyn2:
    s_nop 3
    s_cmp_ge_u32 s{sTk}, {NT}
    s_cbranch_scc1 L_nomore
    s_lshl_b32 s{sOff}, s{sTk}, 14
    s_add_u32 s{sOff}, s{sOff}, s{sDyn}
    s_branch L_issue
    L_nomore:
    s_mov_b32 s{sMode}, 1
    L_drain:
    s_cmp_ge_u32 s{sTc}, s{sTi}
    s_cbranch_scc1 L_done
    s_cmp_lt_u32 s{sTc}, s{sLanded}
    s_cbranch_scc1 L_cons1
    s_waitcnt vmcnt(0)
    s_mov_b32 s{sLanded}, s{sTi}
    s_branch L_cons1
    """)
    e(f"""
    L_qwait:
    ds_read_b32 v{vT}, v{vFl}
    s_add_u32 s{sSpin}, s{sSpin}, 1
    s_cmp_ge_u32 s{sSpin}, {1 << 20}
    s_cbranch_scc1 L_end
    s_waitcnt lgkmcnt(0)
    v_readfirstlane_b32 s{sQ}, v{vT}
    s_nop 3
    s_cmp_eq_u32 s{sQ}, 0
    s_cbranch_scc1 L_loop
    """)
    for j in range(4):
        e(f"ds_read_b128 {vr(vQ+4*j)}, v{vQa} offset:{j*64}")
    e("s_waitcnt lgkmcnt(0)")
    e("s_branch L_cons1")

    def flush(mat):
        e(f"""
        s_nop 7
        ds_write_b128 v{vMOa}, {vr(vO)} offset:{mat*4096}
        ds_write_b64 v{vMLa}, v[{vM}:{vM+1}] offset:{mat*2048}
        v_mov_b32 v{vT}, 1
        s_waitcnt lgkmcnt(0)
        s_mov_b64 exec, 1
        ds_add_u32 v{vFl}, v{vT} offset:{4+4*mat}
        s_mov_b64 exec, -1
        """)
    e("L_switch:")
    flush(0)
    for j in range(4):
        e(f"ds_read_b128 {vr(vQ+4*j)}, v{vQa} offset:{512+j*64}")
    e(f"""
    v_mov_b32 v{vM}, 0xff800000
    v_mov_b32 v{vLs}, 0
    v_mov_b32 v{vO}, 0
    v_mov_b32 v{vO+1}, 0
    v_mov_b32 v{vO+2}, 0
    v_mov_b32 v{vO+3}, 0
    s_waitcnt lgkmcnt(0)
    s_branch L_body
    L_done:
    """)
    flush(1)
    if cfg.stamps:
        e(f"""
        s_memrealtime s[{sStamp+2}:{sStamp+3}]
        s_waitcnt lgkmcnt(0)
        v_mov_b32 v{vS}, s{sStamp+2}
        v_mov_b32 v{vS+1}, s{sStamp+3}
        v_mov_b32 v{vS+2}, s{sTi}
        v_mov_b32 v{vS+3}, 0
        s_lshl_b32 s{sT0}, s2, 2
        s_add_u32 s{sT0}, s{sT0}, s{sWave}
        s_lshl_b32 s{sT0}, s{sT0}, 4
        s_add_u32 s{sT0}, s{sT0}, 0x10100000
        v_mov_b32 v{vT}, s{sT0}
        s_mov_b64 exec, 1
        global_store_dwordx4 v{vT}, {vr(vS)}, s[{sWs}:{sWs+1}]
        """)
    e("s_endpgm")

    vX = 20
    vAo = 38
    vAcc = 44
    vAcc2 = 48
    vE = 52
    vWq = 60
    vWo = 60
    vWo2 = 124
    vGa = 188
    vGm = 220
    vH1p, vMLp, vH1g, vMLg, vH2p, vH2g, vWoO, vMOr, vMLr, vFs = range(224, 234)
    NV = 234
    e(f"""
    L_service:
    s_setprio 3
    v_mov_b32 v{vFs}, {L_FL}
    v_mov_b32 v{vT}, 0
    v_mov_b32 v{vT+1}, 0
    v_mov_b32 v{vT+2}, 0
    v_mov_b32 v{vT+3}, 0
    ds_write_b128 v{vFs}, {vr(vT)}
    """)
    npre = 0
    if cfg.codepf:
        e(f"""
        s_getpc_b64 s[{sPc}:{sPc+1}]
        L_pc:
        s_sub_u32 s{sPc}, s{sPc}, L_pc-{NAME}_kernel
        s_subb_u32 s{sPc+1}, s{sPc+1}, 0
        v_lshlrev_b32 v{vAo}, 6, v{vL}
        v_add_u32 v{vAo+1}, 4096, v{vAo}
        v_add_u32 v{vAo+5}, 8192, v{vAo}
        v_min_u32 v{vAo+1}, L_codeend-{NAME}_kernel-4, v{vAo+1}
        v_min_u32 v{vAo+5}, L_codeend-{NAME}_kernel-4, v{vAo+5}
        global_load_dword v{vH1p}, v{vAo}, s[{sPc}:{sPc+1}]
        global_load_dword v{vMLp}, v{vAo+1}, s[{sPc}:{sPc+1}]
        global_load_dword v{vH1g}, v{vAo+5}, s[{sPc}:{sPc+1}]
        """)
        npre = 2
    e(f"""
    v_lshrrev_b32 v{vT+6}, 3, v{vL}
    v_and_b32 v{vT+7}, 7, v{vL}
    s_and_b32 s{sT0}, s{sJ}, 1
    s_mul_i32 s{sT0}, s{sT0}, 288
    v_mul_u32_u24 v{vAo+2}, 36, v{vT+6}
    v_add_u32 v{vAo+2}, s{sT0}, v{vAo+2}
    v_lshlrev_b32 v{vAo+3}, 13, v{vAo+2}
    v_lshlrev_b32 v{vAo+2}, 1, v{vAo+2}
    v_lshl_add_u32 v{vAo+3}, v{vT+7}, 4, v{vAo+3}
    s_bfe_u32 s{sT0}, s{sJ}, 0x20001
    s_lshl_b32 s{sT0}, s{sT0}, 7
    s_lshl_b32 s{sT1}, s{sH}, 9
    s_add_u32 s{sT0}, s{sT0}, s{sT1}
    v_add_u32 v{vAo+3}, s{sT0}, v{vAo+3}
    s_mov_b32 s{rK+2}, 4718592
    s_mov_b32 s{rK+3}, 0x20000
    s_mov_b32 s{rV+2}, 1152
    s_mov_b32 s{rV+3}, 0x20000
    s_mov_b32 s{sI}, 0
    s_lshl_b32 s{sT0}, s{sH}, 2
    s_add_u32 s{sT0}, s{sT0}, s{sJ}
    s_lshl_b32 s{sT0}, s{sT0}, 8
    s_add_u32 s{sT0}, s{sT0}, {WS_CNT}
    s_cmp_lt_u32 s{sJ}, 4
    s_cselect_b32 s{sT0}, s{sT0}, {WS_SZ:#x}
    v_mov_b32 v{vAo+4}, s{sT0}
    s_mov_b32 s{rWS+2}, {WS_SZ:#x}
    s_mov_b32 s{rWS+3}, 0x20000
    s_cmp_ge_u32 s{sJ}, 8
    s_waitcnt lgkmcnt(0)
    s_cselect_b32 s{rV}, s{sBx}, s{sAx}
    s_cselect_b32 s{rV+1}, s{sBx+1}, s{sAx+1}
    s_cselect_b32 s{rK}, s{sBwq}, s{sAwq}
    s_cselect_b32 s{rK+1}, s{sBwq+1}, s{sAwq+1}
    s_mov_b32 s{rWS}, s{sWs}
    s_mov_b32 s{rWS+1}, s{sWs+1}
    s_load_dwordx2 s[{sE}:{sE+1}], s[{sWs}:{sWs+1}], 0
    """)
    e(f"""
    s_mov_b64 exec, 1
    buffer_store_dword v{vT}, v{vAo+4}, {srd(rWS)}, 0 offen sc1
    s_mov_b64 exec, -1
    """)
    for t in range(4):
        e(f"buffer_load_dwordx4 {vr(vX+4*t)}, v{vAo+2}, {srd(rV)}, 0 offen offset:{16*t}")
    e(f"buffer_load_dwordx2 v[{vX+16}:{vX+17}], v{vAo+2}, {srd(rV)}, 0 offen offset:64")
    for i in range(36):
        e(f"buffer_load_dwordx4 {vr(vWq+4*i)}, v{vAo+3}, {srd(rK)}, s{sI} offen {cfg.wpol}")
        if i < 35:
            e(f"s_add_u32 s{sI}, s{sI}, 8192")
    e("s_barrier")
    selectors()
    e("s_waitcnt vmcnt(36)")
    perms(vE, vX, False)
    for i in range(36):
        if i + 1 < 36:
            perms(vE + 4 * ((i + 1) & 1), vX + (i + 1) // 2, (i + 1) & 1)
        e(f"s_waitcnt vmcnt({35-i})")
        if i == 35:
            e("s_nop 0")
        c = "0" if i == 0 else vr(vAcc)
        e(f"v_mfma_f32_16x16x32_bf16 {vr(vAcc)}, {vr(vE+4*(i&1))}, {vr(vWq+4*i)}, {c}")
    e(f"""
    s_waitcnt vmcnt(0) lgkmcnt(0)
    s_add_u32 s{sTagA}, s{sE}, 1
    s_add_u32 s{sTagB}, s{sE+1}, 0x9e3779b9
    v_and_b32 v{vT+7}, 7, v{vL}
    v_lshlrev_b32 v{vAo}, 6, v{vT+7}
    v_lshl_add_u32 v{vAo}, v{vG}, 5, v{vAo}
    s_lshl_b32 s{sT0}, s2, 9
    s_add_u32 s{sT0}, s{sT0}, {WS_QM}
    v_add_u32 v{vAo}, s{sT0}, v{vAo}
    v_mov_b32 v{vE+1}, s{sTagA}
    v_mov_b32 v{vE+3}, s{sTagB}
    v_mov_b32 v{vE+5}, s{sTagA}
    v_mov_b32 v{vE+7}, s{sTagB}
    """)
    for r in range(4):
        e(f"v_permlane32_swap_b32 v{vAcc+r}, v{vAcc2+r}")
    e("s_nop 1")
    for r in range(4):
        e(f"v_add_f32_dpp v{vE+2*r}, v{vAcc2+r}, v{vAcc+r} row_ror:8 row_mask:0xf bank_mask:0xf")
    e(f"""
    s_mov_b64 exec, 0x00ff00ff
    buffer_store_dwordx4 {vr(vE)}, v{vAo}, {srd(rWS)}, 0 offen sc1
    buffer_store_dwordx4 {vr(vE+4)}, v{vAo}, {srd(rWS)}, 0 offen offset:16 sc1
    s_mov_b64 exec, -1
    """)
    stamp(1)

    def poll(label, loads, regs, code):
        e(f"s_mov_b32 s{sSpin}, 0")
        e(f"{label}:")
        for ins in loads:
            e(ins)
        e(f"""
        s_add_u32 s{sSpin}, s{sSpin}, 1
        s_mov_b32 s{sT0}, {code}
        s_cmp_ge_u32 s{sSpin}, {cfg.spin}
        s_cbranch_scc1 L_fail
        """)
        n = len(regs)
        for k, r in enumerate(regs):
            e(f"s_waitcnt vmcnt({n-1-k})")
            e(f"v_cmpx_eq_u32 vcc, s{sTagA}, v{r+1}")
            e(f"v_cmpx_eq_u32 vcc, s{sTagB}, v{r+3}")
        e(f"""
        s_nop 3
        s_cmp_eq_u64 exec, -1
        s_mov_b64 exec, -1
        s_cbranch_scc0 {label}
        """)

    e(f"""
    s_lshl_b32 s{sT0}, s{sH}, 13
    s_add_u32 s{sT0}, s{sT0}, {WS_QM}
    v_lshlrev_b32 v{vAo+1}, 4, v{vL}
    v_add_u32 v{vAo+1}, s{sT0}, v{vAo+1}
    s_mov_b32 s{sI}, 4096
    """)
    poll("L_pq",
         [f"buffer_load_dwordx4 {vr(vGa+4*k)}, v{vAo+1}, {srd(rWS)}, {'0' if k < 4 else 's%d' % sI} offen offset:{(k&3)*1024} sc1" for k in range(8)],
         [vGa + 4 * k for k in range(8)], 1)
    e(f"""
    v_lshlrev_b32 v{vAo}, 2, v{vL}
    v_add_u32 v{vAo}, {L_Q}, v{vAo}
    """)
    for k in range(0, 8, 2):
        e(f"v_permlane32_swap_b32 v{vGa+4*k}, v{vGa+4*k+4}")
        e(f"v_permlane32_swap_b32 v{vGa+4*k+2}, v{vGa+4*k+6}")
    for k in range(0, 8, 2):
        e(f"v_add_f32 v{vGa+4*k}, v{vGa+4*k}, v{vGa+4*k+4}")
        e(f"v_add_f32 v{vGa+4*k+2}, v{vGa+4*k+2}, v{vGa+4*k+6}")
    for k in range(0, 8, 2):
        e(f"v_cvt_pk_bf16_f32 v{vGa+4*k}, v{vGa+4*k}, v{vGa+4*k+2}")
    for k in range(0, 8, 2):
        e(f"ds_write_b32 v{vAo}, v{vGa+4*k} offset:{k*128}")
    e(f"""
    v_mov_b32 v{vT}, 1
    s_waitcnt lgkmcnt(0)
    ds_write_b32 v{vFs}, v{vT}
    """)
    stamp(2)
    e(f"""
    s_lshr_b32 s{sRbk}, s{sJ}, 2
    s_and_b32 s{sCb}, s{sJ}, 3
    v_and_b32 v{vT}, 1, v{vG}
    v_lshrrev_b32 v{vT+1}, 1, v{vG}
    v_and_b32 v{vT+2}, 7, v{vL}
    v_bfe_u32 v{vT+3}, v{vL}, 3, 1
    """)
    e(f"""
    v_lshl_add_u32 v{vT+4}, v{vT}, 4, v{vT+1}
    s_lshl_b32 s{sT0}, s{sH}, 2
    s_add_u32 s{sT0}, s{sT0}, s{sRbk}
    s_lshl_b32 s{sT1}, s{sT0}, 6
    v_add_u32 v{vT+4}, s{sT1}, v{vT+4}
    v_mul_u32_u24 v{vT+4}, 1152, v{vT+4}
    v_lshl_add_u32 v{vT+4}, v{vP}, 4, v{vT+4}
    s_lshl_b32 s{sT1}, s{sCb}, 8
    v_add_u32 v{vWoO}, s{sT1}, v{vT+4}
    """)
    e(f"""
    s_lshl_b32 s{sT1}, s{sT0}, 13
    s_add_u32 s{sT1}, s{sT1}, {WS_H1}
    v_lshlrev_b32 v{vT+4}, 9, v{vP}
    v_lshl_add_u32 v{vT+4}, v{vG}, 4, v{vT+4}
    v_add_u32 v{vH1g}, s{sT1}, v{vT+4}
    s_lshr_b32 s{sT1}, s{sT0}, 1
    s_lshl_b32 s{sT1}, s{sT1}, 8
    s_add_u32 s{sT1}, s{sT1}, {WS_ML}
    v_lshlrev_b32 v{vT+4}, 4, v{vP}
    v_add_u32 v{vMLg}, s{sT1}, v{vT+4}
    """)
    e(f"""
    s_lshl_b32 s{sT0}, s{sT0}, 7
    s_lshl_b32 s{sT1}, s{sCb}, 16
    s_add_u32 s{sT0}, s{sT0}, s{sT1}
    s_add_u32 s{sT0}, s{sT0}, {WS_H2}
    v_lshrrev_b32 v{vT+4}, 1, v{vP}
    v_lshlrev_b32 v{vT+4}, 13, v{vT+4}
    v_and_b32 v{vT+5}, 1, v{vP}
    v_lshl_add_u32 v{vT+5}, v{vT+5}, 1, v{vT}
    v_lshl_add_u32 v{vT+5}, v{vT+5}, 1, v{vT+1}
    v_lshl_add_u32 v{vT+4}, v{vT+5}, 4, v{vT+4}
    v_add_u32 v{vH2p}, s{sT0}, v{vT+4}
    """)
    e(f"""
    v_lshl_add_u32 v{vT+4}, v{vT+3}, 1, v{vT+1}
    v_lshlrev_b32 v{vT+4}, 13, v{vT+4}
    v_lshl_add_u32 v{vT+5}, v{vT}, 3, v{vT+2}
    v_lshl_add_u32 v{vT+4}, v{vT+5}, 5, v{vT+4}
    s_lshl_b32 s{sT0}, s{sH}, 15
    s_lshl_b32 s{sT1}, s{sJ}, 9
    s_add_u32 s{sT0}, s{sT0}, s{sT1}
    s_add_u32 s{sT0}, s{sT0}, {WS_H1}
    v_add_u32 v{vH1p}, s{sT0}, v{vT+4}
    s_lshl_b32 s{sT0}, s{sH}, 9
    s_lshl_b32 s{sT1}, s{sJ}, 4
    s_add_u32 s{sT0}, s{sT0}, s{sT1}
    s_add_u32 s{sT0}, s{sT0}, {WS_ML}
    v_lshlrev_b32 v{vT+4}, 8, v{vT+3}
    v_add_u32 v{vMLp}, s{sT0}, v{vT+4}
    s_lshl_b32 s{sT0}, s2, 13
    s_add_u32 s{sT0}, s{sT0}, {WS_H2}
    v_lshlrev_b32 v{vT+4}, 4, v{vL}
    v_add_u32 v{vH2g}, s{sT0}, v{vT+4}
    v_add_u32 v{vMOr}, {L_MO}, v{vT+4}
    v_lshlrev_b32 v{vT+4}, 3, v{vL}
    v_add_u32 v{vMLr}, {L_MML}, v{vT+4}
    s_mov_b32 s{rK}, s{sAwo}
    s_mov_b32 s{rK+1}, s{sAwo+1}
    s_mov_b32 s{rO}, s{sOut}
    s_mov_b32 s{rO+1}, s{sOut+1}
    s_mov_b32 s{rO+2}, 2304
    s_mov_b32 s{rO+3}, 0x20000
    s_mov_b32 s{sMat}, 0
    s_mov_b32 s{sMsk}, 0
    s_mov_b32 s{sMsk+1}, -1
    L_mat:
    """)
    def rowconst(i):
        k, v = i >> 1, i & 1
        return 32 * (k >> 2) + 8 * v + ((2 * k) & 7)
    for i in range(16):
        e(f"s_mov_b32 s{sI}, {rowconst(i)*1152}")
        e(f"buffer_load_dwordx4 {vr(vWo+4*i)}, v{vWoO}, {srd(rK)}, s{sI} offen {cfg.wpol}")
    e(f"""
    s_cmp_eq_u32 s{sCb}, 3
    s_cbranch_scc0 L_now2
    s_mov_b32 exec_lo, 0x00ff00ff
    s_mov_b32 exec_hi, 0x00ff00ff
    """)
    for i in range(16):
        e(f"s_mov_b32 s{sI}, {rowconst(i)*1152}")
        e(f"buffer_load_dwordx4 {vr(vWo2+4*i)}, v{vWoO}, {srd(rK)}, s{sI} offen offset:256 {cfg.wpol}")
    e(f"""
    s_mov_b64 exec, -1
    L_now2:
    s_mov_b32 s{sSpin}, 0
    L_wcnt:
    ds_read_b32 v{vT}, v{vFs} offset:4
    s_add_u32 s{sSpin}, s{sSpin}, 1
    s_mov_b32 s{sT0}, 2
    s_cmp_ge_u32 s{sSpin}, {1 << 20}
    s_cbranch_scc1 L_fail
    s_waitcnt lgkmcnt(0)
    v_readfirstlane_b32 s{sT1}, v{vT}
    s_nop 3
    s_cmp_eq_u32 s{sT1}, 4
    s_cbranch_scc1 L_merge
    s_sleep 1
    s_branch L_wcnt
    L_merge:
    """)
    if cfg.stamps:
        e(f"""
        s_cmp_eq_u32 s{sMat}, 0
        s_cbranch_scc1 L_st3
        s_memrealtime s[{sStamp+10}:{sStamp+11}]
        s_branch L_st3b
        L_st3:
        s_memrealtime s[{sStamp+6}:{sStamp+7}]
        L_st3b:
        """)
    vMo = vGa
    vMl = vGa + 16
    for w in range(4):
        e(f"ds_read_b64 v[{vMl+2*w}:{vMl+2*w+1}], v{vMLr} offset:{w*512}")
    for w in range(4):
        e(f"ds_read_b128 {vr(vMo+4*w)}, v{vMOr} offset:{w*1024}")
    e(f"""
    v_mov_b32 v{vE+1}, s{sTagA}
    v_mov_b32 v{vE+3}, s{sTagB}
    v_mov_b32 v{vE+5}, s{sTagA}
    v_mov_b32 v{vE+7}, s{sTagB}
    v_mov_b32 v{vAcc+1}, s{sTagA}
    v_mov_b32 v{vAcc+3}, s{sTagB}
    s_waitcnt lgkmcnt(0)
    v_max3_f32 v{vAcc}, v{vMl}, v{vMl+2}, v{vMl+4}
    v_max_f32 v{vAcc}, v{vAcc}, v{vMl+6}
    """)
    for w in range(4):
        e(f"v_sub_f32 v{vMl+2*w}, v{vMl+2*w}, v{vAcc}")
    for w in range(4):
        e(f"v_exp_f32 v{vMl+2*w}, v{vMl+2*w}")
    e(f"s_nop 0")
    e(f"v_mul_f32 v{vAcc+2}, v{vMl}, v{vMl+1}")
    for r in range(4):
        e(f"v_mul_f32 v{vE+2*r}, v{vMl}, v{vMo+r}")
    for w in range(1, 4):
        e(f"v_fmac_f32 v{vAcc+2}, v{vMl+2*w}, v{vMl+2*w+1}")
        for r in range(4):
            e(f"v_fmac_f32 v{vE+2*r}, v{vMl+2*w}, v{vMo+4*w+r}")
    e(f"""
    buffer_store_dwordx4 {vr(vE)}, v{vH1p}, {srd(rWS)}, 0 offen sc1
    buffer_store_dwordx4 {vr(vE+4)}, v{vH1p}, {srd(rWS)}, 0 offen offset:16 sc1
    v_mov_b32 v{vT}, v{vAcc+2}
    s_nop 1
    v_permlane32_swap_b32 v{vAcc+2}, v{vT}
    v_add_f32 v{vAcc+2}, v{vAcc+2}, v{vT}
    v_mov_b32 v{vT}, v{vAcc+2}
    s_nop 1
    v_permlane16_swap_b32 v{vAcc+2}, v{vT}
    v_add_f32 v{vAcc+2}, v{vAcc+2}, v{vT}
    s_mov_b64 exec, 0x101
    buffer_store_dwordx4 {vr(vAcc)}, v{vMLp}, {srd(rWS)}, 0 offen sc1
    s_mov_b64 exec, -1
    """)
    poll("L_p1",
         [f"buffer_load_dwordx4 {vr(vGm)}, v{vMLg}, {srd(rWS)}, 0 offen sc1"] +
         [f"buffer_load_dwordx4 {vr(vGa+4*k)}, v{vH1g}, {srd(rWS)}, 0 offen offset:{k*64} sc1" for k in range(8)],
         [vGm] + [vGa + 4 * k for k in range(8)], 3)
    if cfg.stamps:
        e(f"s_memrealtime s[{sStamp+12}:{sStamp+13}]")
    def allred(op, regs):
        for sh in (8, 4, 2, 1):
            for r in regs:
                e(f"{op}_dpp v{r}, v{r}, v{r} row_ror:{sh} row_mask:0xf bank_mask:0xf")
            if len(regs) < 3:
                e(f"s_nop {2-len(regs)}")
    e(f"v_mov_b32 v{vT}, v{vGm}")
    e("s_nop 1")
    allred("v_max_f32", [vT])
    e(f"""
    v_sub_f32 v{vGm}, v{vGm}, v{vT}
    v_exp_f32 v{vGm}, v{vGm}
    s_nop 0
    v_mul_f32 v{vT}, v{vGm}, v{vGm+2}
    s_nop 1
    """)
    allred("v_add_f32", [vT])
    e(f"""
    v_rcp_f32 v{vT}, v{vT}
    s_nop 0
    v_mul_f32 v{vGm}, v{vGm}, v{vT}
    """)
    vals = [vGa + 2 * i for i in range(16)]
    for r in vals:
        e(f"v_mul_f32 v{r}, v{vGm}, v{r}")
    allred("v_add_f32", vals)
    for k in range(8):
        e(f"v_cvt_pk_bf16_f32 v{vGa+4*k}, v{vGa+4*k}, v{vGa+4*k+2}")
    def oproj(acc, wbase):
        perms(vE, vGa, False)
        for i in range(16):
            if i + 1 < 16:
                perms(vE + 4 * ((i + 1) & 1), vGa + 4 * ((i + 1) >> 1), (i + 1) & 1)
            else:
                e("s_nop 1")
            c = "0" if i == 0 else vr(acc)
            e(f"v_mfma_f32_16x16x32_bf16 {vr(acc)}, {vr(vE+4*(i&1))}, {vr(wbase+4*i)}, {c}")
    def h2store(acc, soff):
        e(f"""
        v_mov_b32 v{vX+1}, s{sTagA}
        v_mov_b32 v{vX+3}, s{sTagB}
        s_nop 6
        v_cndmask_b32 v{vX}, v{acc}, v{acc+2}, s[{sMsk}:{sMsk+1}]
        v_cndmask_b32 v{vX+2}, v{acc+1}, v{acc+3}, s[{sMsk}:{sMsk+1}]
        """)
    oproj(vAcc, vWo)
    h2store(vAcc, 0)
    e(f"""
    buffer_store_dwordx4 {vr(vX)}, v{vH2p}, {srd(rWS)}, 0 offen sc1
    s_cmp_eq_u32 s{sCb}, 3
    s_cbranch_scc0 L_no2
    """)
    oproj(vAcc2, vWo2)
    h2store(vAcc2, 0)
    e(f"""
    s_mov_b32 s{sI}, 65536
    s_mov_b32 exec_lo, 0x00ff00ff
    s_mov_b32 exec_hi, 0x00ff00ff
    buffer_store_dwordx4 {vr(vX)}, v{vH2p}, {srd(rWS)}, s{sI} offen sc1
    s_mov_b64 exec, -1
    L_no2:
    """)
    if cfg.stamps:
        e(f"s_memrealtime s[{sStamp+14}:{sStamp+15}]")
    e(f"""
    s_cmp_lt_u32 s2, 36
    s_cbranch_scc0 L_nored
    s_mov_b32 s{sI}, 4096
    """)
    poll("L_p2",
         [f"buffer_load_dwordx4 {vr(vGa+4*k)}, v{vH2g}, {srd(rWS)}, {'0' if k < 4 else 's%d' % sI} offen offset:{(k&3)*1024} sc1" for k in range(8)],
         [vGa + 4 * k for k in range(8)], 4)
    for st in (4, 2, 1):
        for k in range(st):
            e(f"v_add_f32 v{vGa+4*k}, v{vGa+4*k}, v{vGa+4*(k+st)}")
            e(f"v_add_f32 v{vGa+4*k+2}, v{vGa+4*k+2}, v{vGa+4*(k+st)+2}")
    e(f"""
    s_mul_i32 s{sT0}, s{sMat}, 1152
    s_lshl_b32 s{sT1}, s2, 5
    v_add_f32_dpp v{vGa}, v{vGa}, v{vGa} row_ror:8 row_mask:0xf bank_mask:0xf
    v_add_f32_dpp v{vGa+2}, v{vGa+2}, v{vGa+2} row_ror:8 row_mask:0xf bank_mask:0xf
    s_add_u32 s{sT0}, s{sT0}, s{sT1}
    v_mov_b32 v{vGa+1}, v{vGa}
    v_mov_b32 v{vGa+3}, v{vGa+2}
    s_nop 1
    v_permlane16_swap_b32 v{vGa}, v{vGa+1}
    v_permlane16_swap_b32 v{vGa+2}, v{vGa+3}
    v_add_f32 v{vGa}, v{vGa}, v{vGa+1}
    v_add_f32 v{vGa+2}, v{vGa+2}, v{vGa+3}
    v_mov_b32 v{vGa+1}, v{vGa}
    v_mov_b32 v{vGa+3}, v{vGa+2}
    s_nop 1
    v_permlane32_swap_b32 v{vGa}, v{vGa+1}
    v_permlane32_swap_b32 v{vGa+2}, v{vGa+3}
    v_add_f32 v{vGa}, v{vGa}, v{vGa+1}
    v_add_f32 v{vGa+2}, v{vGa+2}, v{vGa+3}
    v_lshlrev_b32 v{vT}, 2, v{vL}
    v_cvt_pk_bf16_f32 v{vGa}, v{vGa}, v{vGa+2}
    s_mov_b64 exec, 0xff
    buffer_store_dword v{vGa}, v{vT}, {srd(rO)}, s{sT0} offen
    s_mov_b64 exec, -1
    L_nored:
    s_cmp_eq_u32 s{sMat}, 1
    s_cbranch_scc1 L_fin
    """)
    stamp(4)
    e(f"""
    s_mov_b32 s{sMat}, 1
    s_mov_b32 s{rK}, s{sBwo}
    s_mov_b32 s{rK+1}, s{sBwo+1}
    v_add_u32 v{vH1p}, 0x80000, v{vH1p}
    v_add_u32 v{vH1g}, 0x80000, v{vH1g}
    v_add_u32 v{vMLp}, 0x2000, v{vMLp}
    v_add_u32 v{vMLg}, 0x2000, v{vMLg}
    v_add_u32 v{vH2p}, {36*8192}, v{vH2p}
    v_add_u32 v{vH2g}, {36*8192}, v{vH2g}
    v_add_u32 v{vMOr}, 4096, v{vMOr}
    v_add_u32 v{vMLr}, 2048, v{vMLr}
    v_add_u32 v{vFs}, 4, v{vFs}
    s_branch L_mat
    L_fin:
    s_cmp_eq_u32 s2, 0
    s_cbranch_scc0 L_fin2
    v_mov_b32 v{vT}, s{sTagA}
    v_mov_b32 v{vT+1}, s{sTagB}
    v_mov_b32 v{vT+2}, 0
    s_mov_b64 exec, 1
    buffer_store_dwordx2 v[{vT}:{vT+1}], v{vT+2}, {srd(rWS)}, 0 offen sc1
    s_mov_b64 exec, -1
    L_fin2:
    """)
    if cfg.pad:
        e(f"""
        L_pad:
        s_memrealtime s[92:93]
        s_waitcnt lgkmcnt(0)
        s_sub_u32 s92, s92, s{sStamp}
        s_cmp_lt_u32 s92, {cfg.pad*100}
        s_cbranch_scc1 L_pad
        """)
    if cfg.stamps:
        e(f"""
        s_waitcnt vmcnt(0)
        s_memrealtime s[{sStamp+16}:{sStamp+17}]
        s_waitcnt lgkmcnt(0)
        s_mul_i32 s{sT0}, s2, {9*8}
        s_add_u32 s{sT0}, s{sT0}, 0x10000000
        v_mov_b32 v{vT}, s{sT0}
        s_mov_b64 exec, 1
        """)
        for i in range(9):
            e(f"""
            v_mov_b32 v{vE}, s{sStamp+2*i}
            v_mov_b32 v{vE+1}, s{sStamp+2*i+1}
            global_store_dwordx2 v{vT}, v[{vE}:{vE+1}], s[{sWs}:{sWs+1}] offset:{8*i}
            s_nop 1
            """)
    e(f"""
    s_endpgm
    L_fail:
    v_mov_b32 v{vT}, s{sT0}
    v_mov_b32 v{vT+1}, 0
    s_mov_b64 exec, 1
    global_store_dword v{vT+1}, v{vT}, s[{sDbg}:{sDbg+1}]
    L_end:
    s_endpgm
    L_codeend:
    """)
    nv = (NV + 7) // 8 * 8
    L.append('.section .rodata,"a"')
    L.append(".p2align 6")
    L.append(f".amdhsa_kernel {NAME}_kernel")
    L.append(f"  .amdhsa_next_free_vgpr {nv}")
    L.append("  .amdhsa_next_free_sgpr 96")
    L.append(f"  .amdhsa_accum_offset {min(256, nv)}")
    L.append("  .amdhsa_group_segment_fixed_size 0")
    L.append("  .amdhsa_kernarg_size 104")
    L.append("  .amdhsa_user_sgpr_count 2")
    L.append("  .amdhsa_user_sgpr_kernarg_segment_ptr 1")
    L.append("  .amdhsa_system_sgpr_workgroup_id_x 1")
    L.append("  .amdhsa_float_denorm_mode_32 3")
    L.append(".end_amdhsa_kernel")
    return "\n".join(L) + "\n"


if __name__ == "__main__":
    out = sys.argv[1]
    kw = {}
    for a in sys.argv[2:]:
        k, v = a.split("=")
        try:
            v = int(v)
        except ValueError:
            v = v.replace("+", " ")
        kw[k] = v
    open(out, "w").write(gen(Cfg(**kw)))
```

```python
import sys, math, struct

NAME = "concat_heads__sliding_block_cached__gqa_block_cached__decode"

HEADER = """; Kernarg layout for this problem (104 bytes, ptrs only, base s[0:1]):
"""


def f32bits(x):
    return struct.unpack("<I", struct.pack("<f", x))[0]


class Cfg:
    NS = 120
    H = 6
    rot = 5
    trigA = 60
    trigB = 80
    csleep = 1
    stamps = 0
    trace = 0
    pad = 0
    mode = ""
    codepf = 1
    kvpol = "nt"
    wpol = "nt"
    spin = 1 << 14

    def __init__(self, **kw):
        for k, v in kw.items():
            assert hasattr(self, k), k
            setattr(self, k, v)


def gen(cfg):
    NS, H = cfg.NS, cfg.H
    assert NS % 4 == 0 and 96 <= NS <= 144 and 3 <= H <= 7
    NT = 1152 - 8 * NS
    R = 16
    L = []

    def e(s):
        for ln in s.strip("\n").split("\n"):
            ln = ln.strip()
            if ln:
                L.append(ln if ln.endswith(":") else "    " + ln)

    WS_CNT = 0x1000
    WS_QM = 0x10000
    WS_ML = 0x20000
    WS_H1 = 0x40000
    WS_H2 = 0xC0000
    WS_SZ = 0x200000
    ML_M, H1_M, H2_M = 0x4000, 0x40000, 36 * 4096
    RING = R * 8192
    L_Q = RING
    L_MO = L_Q + 1024
    L_MML = L_MO + 8192
    L_FL = L_MML + 4096
    LDS = L_FL + 64
    BIG = 0x7fffffff
    sAx, sAk, sAv, sAwq, sAwo, sBx, sBk, sBv = 4, 6, 8, 10, 12, 14, 16, 18
    sBwq, sBwo, sOut, sDbg, sWs, sE = 20, 22, 24, 26, 28, 30
    sIsA = 31
    sT0, sT1, sT2 = 33, 34, 35
    rWS, rK, rV, rO = 36, 40, 44, 48
    sH, sJ, sWave, sC = 52, 53, 54, 55
    sStamp = 76

    def srd(r): return f"s[{r}:{r+3}]"
    def vr(a, n=4): return f"v[{a}:{a+n-1}]"
    def sp(a): return f"s[{a}:{a+1}]"
    def stamp(i):
        if cfg.stamps:
            e(f"s_memrealtime {sp(sStamp+2*i)}")
    DPP = "row_mask:0xf bank_mask:0xf"

    L.append(HEADER.rstrip("\n"))
    L.append(f"; @launch grid=(256,1,1) block=(384,1,1) lds={LDS}")
    L.append('.amdgcn_target "amdgcn-amd-amdhsa--gfx950"')
    L.append(".text")
    L.append(f".globl {NAME}_kernel")
    L.append(".p2align 8")
    L.append(f".type {NAME}_kernel,@function")
    L.append(f"{NAME}_kernel:")
    e(f"""
    s_cmp_ge_u32 s2, 256
    s_cbranch_scc1 L_end
    s_load_dwordx16 s[4:19], s[0:1], 0
    s_load_dwordx8 s[20:27], s[0:1], 64
    s_load_dwordx2 s[28:29], s[0:1], 96
    """)
    if cfg.stamps or cfg.pad:
        e(f"s_memrealtime {sp(sStamp)}")
    vL, vG, vP = 0, 1, 2
    vSelE, vSelO = 4, 8
    vT = 12
    e(f"""
    v_lshrrev_b32 v{vT}, 6, v0
    v_and_b32 v{vL}, 63, v0
    v_readfirstlane_b32 s{sWave}, v{vT}
    v_lshrrev_b32 v{vG}, 4, v{vL}
    v_and_b32 v{vP}, 15, v{vL}
    s_lshr_b32 s{sH}, s2, 4
    s_and_b32 s{sJ}, s2, 15
    s_xor_b32 s{sT0}, s{sH}, s{sJ}
    s_and_b32 s{sT0}, s{sT0}, 3
    s_cmp_eq_u32 s{sT0}, 0
    s_cselect_b32 s{sIsA}, 1, 0
    s_cmp_eq_u32 s{sWave}, 3
    s_cbranch_scc1 L_service
    s_cmp_eq_u32 s{sWave}, 2
    s_cbranch_scc0 L_consumer
    """)

    def selectors():
        e(f"""
        v_and_b32 v{vT}, 1, v{vL}
        v_bfe_u32 v{vT+1}, v{vL}, 1, 2
        v_mov_b32 v{vT+2}, 0x0c0c0100
        v_mov_b32 v{vT+3}, 0x01000c0c
        v_cmp_eq_u32 vcc, 1, v{vT}
        v_mov_b32 v{vT+4}, 0x0c0c0302
        v_mov_b32 v{vT+5}, 0x03020c0c
        v_cndmask_b32 v{vT+2}, v{vT+2}, v{vT+3}, vcc
        v_cndmask_b32 v{vT+4}, v{vT+4}, v{vT+5}, vcc
        v_mov_b32 v{vT+3}, 0x0c0c0c0c
        """)
        for j in range(4):
            e(f"""
            v_cmp_eq_u32 vcc, {j}, v{vT+1}
            s_nop 1
            v_cndmask_b32 v{vSelE+j}, v{vT+3}, v{vT+2}, vcc
            v_cndmask_b32 v{vSelO+j}, v{vT+3}, v{vT+4}, vcc
            """)

    def perms(dst, src, odd):
        for j in range(4):
            e(f"v_perm_b32 v{dst+j}, v{src}, v{src}, v{(vSelO if odd else vSelE)+j}")

    vKg, vVg, vFl, vTk, vAt, vPub, vPr = 20, 24, 25, 26, 28, 30, 32
    sTi, sOff, sBst, sDyn, sCnt, sReq, sTk, sSpin, sRnd, sSlot, sLow, sEnd, sLen, sRot, sSw, sBln = range(56, 72)
    e(f"""
    s_setprio 3
    v_xor_b32 v{vT}, v{vP}, v{vG}
    v_lshlrev_b32 v{vT+1}, 8, v{vG}
    """)
    for i in range(4):
        e(f"""
        v_xor_b32 v{vT+2}, {4*i}, v{vT}
        v_lshl_add_u32 v{vKg+i}, v{vT+2}, 4, v{vT+1}
        """)
    e(f"""
    v_lshlrev_b32 v{vVg}, 4, v{vL}
    v_mov_b32 v{vFl}, {L_FL}
    v_mov_b32 v{vPub+1}, {BIG:#x}
    v_mov_b32 v{vAt}, {WS_SZ:#x}
    s_lshl_b32 s{sT0}, s{sH}, 23
    s_mul_i32 s{sRot}, s2, {cfg.rot}
    s_lshr_b32 s{sT1}, s{sRot}, 4
    s_xor_b32 s{sRot}, s{sRot}, s{sT1}
    s_and_b32 s{sRot}, s{sRot}, 31
    s_lshl_b32 s{sRot}, s{sRot}, 12
    s_and_b32 s{sT1}, s{sH}, 3
    s_sub_u32 s{sT1}, s{sJ}, s{sT1}
    s_add_u32 s{sT1}, s{sT1}, 3
    s_lshr_b32 s{sT1}, s{sT1}, 2
    s_lshl_b32 s{sT1}, s{sT1}, 18
    s_mul_i32 s{sBst}, s{sJ}, {NS*4096}
    s_sub_u32 s{sBst}, s{sBst}, s{sT1}
    s_add_u32 s{sBst}, s{sBst}, s{sT0}
    s_add_u32 s{sDyn}, s{sT0}, {(16*NS-256)*4096}
    s_lshr_b32 s{sT1}, s{sJ}, 2
    s_lshl_b32 s{sT1}, s{sT1}, 18
    s_add_u32 s{sT1}, s{sT1}, s{sT0}
    s_add_u32 s{sT1}, s{sT1}, {28672*256}
    s_lshl_b32 s{sCnt}, s{sH}, 8
    s_add_u32 s{sCnt}, s{sCnt}, {WS_CNT}
    s_mov_b32 s{sBln}, {(NS-64)*4096}
    s_mov_b32 s{sLen}, {NS*4096}
    s_cmp_eq_u32 s{sIsA}, 1
    s_cselect_b32 s{sOff}, s{sT1}, s{sBst}
    s_cselect_b32 s{sLen}, 0x40000, s{sLen}
    s_cselect_b32 s{sSw}, 16, -1
    s_add_u32 s{sEnd}, s{sOff}, s{sLen}
    s_add_u32 s{sOff}, s{sOff}, s{sRot}
    s_mov_b32 s{sLow}, 0
    s_mov_b32 s{sTi}, 0
    s_mov_b32 s{sRnd}, 0
    s_mov_b32 s{sSlot}, 0
    s_mov_b32 s{rK+2}, 0x8000000
    s_mov_b32 s{rK+3}, 0x20000
    s_mov_b32 s{rV+2}, 0x8000000
    s_mov_b32 s{rV+3}, 0x20000
    s_mov_b32 s{rWS+2}, {WS_SZ:#x}
    s_mov_b32 s{rWS+3}, 0x20000
    s_cmp_eq_u32 s{sIsA}, 1
    s_waitcnt lgkmcnt(0)
    s_cselect_b32 s{rK}, s{sAk}, s{sBk}
    s_cselect_b32 s{rK+1}, s{sAk+1}, s{sBk+1}
    s_cselect_b32 s{rV}, s{sAv}, s{sBv}
    s_cselect_b32 s{rV+1}, s{sAv+1}, s{sBv+1}
    s_mov_b32 s{rWS}, s{sWs}
    s_mov_b32 s{rWS+1}, s{sWs+1}
    s_barrier
    L_round:
    """)
    def gops(m): return 4 + (1 if (m & 3) == 1 else 0)
    def allowed(n):
        c = sum(gops(m) for m in range(n - H + 1, n))
        if ((n - H) & 3) == 1 and not (H == 7 and (n & 3) == 0):
            c += 1
        return c
    def publish(k):
        e(f"""
        s_sub_u32 s{sT0}, s{sTi}, {k}
        s_max_i32 s{sT0}, s{sT0}, s{sLow}
        v_mov_b32 v{vPub}, s{sT0}
        ds_write_b64 v{vFl}, v[{vPub}:{vPub+1}] offset:16
        """)
    for u in range(4):
        e(f"s_waitcnt vmcnt({allowed(2*u)})")
        if H & 1:
            publish((H - 1) // 2)
        if u in (0, 2):
            e(f"""
            s_cmp_ge_u32 s{sRnd}, {NS//4}
            s_cbranch_scc0 L_st{u}
            v_readfirstlane_b32 s{sTk}, v{vTk+u//2}
            s_mov_b32 s{sEnd}, -1
            s_nop 2
            s_cmp_ge_u32 s{sTk}, {NT}
            s_cbranch_scc1 L_ldone
            s_lshl_b32 s{sOff}, s{sTk}, 13
            s_add_u32 s{sOff}, s{sOff}, s{sDyn}
            L_st{u}:
            """)
        e(f"""
        s_add_u32 m0, s{sSlot}, {u*8192}
        s_nop 0
        """)
        for i in range(4):
            e(f"buffer_load_dwordx4 v{vKg+i}, {srd(rK)}, s{sOff} offen offset:{i*1024} {cfg.kvpol} lds")
        e(f"s_waitcnt vmcnt({allowed(2*u+1)})")
        if not H & 1:
            publish((H - 2) // 2)
        e(f"s_add_u32 m0, s{sSlot}, {u*8192+4096}")
        e(f"v_mov_b32 v{vTk+u//2}, 1" if u in (0, 2) else "s_nop 0")
        for i in range(4):
            e(f"buffer_load_dwordx4 v{vVg}, {srd(rV)}, s{sOff} offen offset:{i*1024} {cfg.kvpol} lds")
        if u in (0, 2):
            e(f"""
            s_mov_b64 exec, 1
            buffer_atomic_add v{vTk+u//2}, v{vAt}, {srd(rWS)}, 0 offen sc0
            s_mov_b64 exec, -1
            """)
        e(f"""
        s_add_u32 s{sTi}, s{sTi}, 1
        s_add_u32 s{sOff}, s{sOff}, 4096
        s_cmp_eq_u32 s{sOff}, s{sEnd}
        s_cselect_b32 s{sT0}, s{sLen}, 0
        s_sub_u32 s{sOff}, s{sOff}, s{sT0}
        """)
        if u == 2:
            e(f"ds_read_b128 {vr(vPr)}, v{vFl} offset:32")
    if cfg.trace:
        e(f"""
        s_memrealtime s[72:73]
        s_waitcnt lgkmcnt(0)
        s_add_u32 m0, s{sRnd}, 2
        s_nop 0
        v_writelane_b32 v50, s72, m0
        """)
    e(f"""
    s_add_u32 s{sRnd}, s{sRnd}, 1
    s_add_u32 s{sSlot}, s{sSlot}, 32768
    s_and_b32 s{sSlot}, s{sSlot}, {RING-1}
    s_cmp_ge_u32 s{sRnd}, {NS//4-1}
    s_cselect_b32 s{sReq}, s{sCnt}, {WS_SZ:#x}
    v_mov_b32 v{vAt}, s{sReq}
    s_cmp_eq_u32 s{sRnd}, s{sSw}
    s_cbranch_scc0 L_nosw
    s_mov_b32 s{rK}, s{sBk}
    s_mov_b32 s{rK+1}, s{sBk+1}
    s_mov_b32 s{rV}, s{sBv}
    s_mov_b32 s{rV+1}, s{sBv+1}
    s_add_u32 s{sOff}, s{sBst}, s{sRot}
    s_add_u32 s{sEnd}, s{sBst}, s{sBln}
    s_mov_b32 s{sLen}, s{sBln}
    L_nosw:
    s_mov_b32 s{sSpin}, 0
    L_space:
    s_waitcnt lgkmcnt(0)
    v_min3_u32 v{vT}, v{vPr}, v{vPr+1}, v{vPr+2}
    v_min_u32 v{vT}, v{vT}, v{vPr+3}
    s_nop 0
    v_readfirstlane_b32 s{sT0}, v{vT}
    s_nop 3
    s_add_u32 s{sT0}, s{sT0}, 3
    s_cmp_ge_u32 s{sT0}, s{sRnd}
    s_cbranch_scc1 L_round
    s_waitcnt vmcnt(0)
    s_mov_b32 s{sLow}, s{sTi}
    v_mov_b32 v{vPub}, s{sTi}
    ds_write_b64 v{vFl}, v[{vPub}:{vPub+1}] offset:16
    ds_read_b128 {vr(vPr)}, v{vFl} offset:32
    s_add_u32 s{sSpin}, s{sSpin}, 1
    s_cmp_lt_u32 s{sSpin}, {1 << 20}
    s_cbranch_scc1 L_space
    s_endpgm
    L_ldone:
    v_mov_b32 v{vPub+1}, s{sTi}
    """)
    for d, alw in ((4, 26), (3, 17), (2, 9), (1, 0)):
        if d <= (H + 1) // 2 + 1:
            e(f"s_waitcnt vmcnt({alw})")
            publish(d - 1)
    if cfg.trace:
        e(f"""
        s_memrealtime s[72:73]
        s_waitcnt lgkmcnt(0)
        v_writelane_b32 v50, s72, 63
        v_writelane_b32 v50, s{sStamp}, 0
        v_writelane_b32 v50, s{sTi}, 1
        s_lshl_b32 s{sT0}, s2, 8
        s_add_u32 s{sT0}, s{sT0}, 0x10200000
        v_lshlrev_b32 v{vT}, 2, v{vL}
        v_add_u32 v{vT}, s{sT0}, v{vT}
        global_store_dword v{vT}, v50, {sp(sWs)}
        """)
    e("s_endpgm")

    vKl, vVl, vQa, vMOa, vMLa, vFl, vPg = 25, 29, 30, 31, 32, 33, 34
    vLF = 36
    vM, vLs = 38, 39
    vA = 40
    vAl, vMn, vU, vW = 45, 46, 47, 48
    vS, vO, vPp, vQ, vK, vV, vB = 52, 56, 60, 64, 80, 96, 112
    sTc, sCn, sCrel, sLanded, sFinal, sSpin, sCw, sSwc = range(56, 64)
    e(f"""
    L_consumer:
    s_barrier
    {"s_endpgm" if cfg.mode in ("ldonly", "wqonly") else ""}
    s_and_b32 s{sCw}, s{sWave}, 1
    s_lshr_b32 s{sT0}, s{sWave}, 1
    s_or_b32 s{sCw}, s{sCw}, s{sT0}
    s_mov_b32 s{sTc}, s{sCw}
    s_mov_b32 s{sCn}, 0
    s_lshl_b32 s{sCrel}, s{sCw}, 13
    s_cmp_eq_u32 s{sIsA}, 1
    s_cselect_b32 s{sSwc}, 16, -1
    s_cselect_b32 s{sT2}, 0, 512
    """)
    selectors()
    e(f"""
    v_lshlrev_b32 v{vT}, 8, v{vP}
    v_xor_b32 v{vT+1}, v{vP}, v{vG}
    """)
    for j in range(4):
        e(f"""
        v_xor_b32 v{vT+2}, {4*j}, v{vT+1}
        v_lshl_add_u32 v{vKl+j}, v{vT+2}, 4, v{vT}
        """)
    e(f"""
    v_lshlrev_b32 v{vT}, 10, v{vG}
    v_lshl_add_u32 v{vT}, v{vP}, 4, v{vT}
    v_add_u32 v{vVl}, 4096, v{vT}
    v_lshrrev_b32 v{vT}, 3, v{vP}
    v_lshlrev_b32 v{vT}, 8, v{vT}
    v_lshl_add_u32 v{vT}, v{vG}, 4, v{vT}
    v_add_u32 v{vQa}, {L_Q}, v{vT}
    v_add_u32 v{vA}, s{sT2}, v{vQa}
    s_lshl_b32 s{sT0}, s{sCw}, 10
    s_add_u32 s{sT0}, s{sT0}, {L_MO}
    v_lshlrev_b32 v{vT}, 4, v{vL}
    v_add_u32 v{vMOa}, s{sT0}, v{vT}
    s_lshl_b32 s{sT0}, s{sCw}, 9
    s_add_u32 s{sT0}, s{sT0}, {L_MML}
    v_lshlrev_b32 v{vT}, 3, v{vL}
    v_add_u32 v{vMLa}, s{sT0}, v{vT}
    v_mov_b32 v{vFl}, {L_FL}
    s_lshl_b32 s{sT0}, s{sCw}, 2
    s_add_u32 s{sT0}, s{sT0}, {L_FL+32}
    v_mov_b32 v{vPg}, s{sT0}
    s_mov_b32 s{sC}, {f32bits(math.log2(math.e)/math.sqrt(128.0)):#x}
    v_mov_b32 v{vM}, 0xff800000
    v_mov_b32 v{vLs}, 0
    v_mov_b32 v{vO}, 0
    v_mov_b32 v{vO+1}, 0
    v_mov_b32 v{vO+2}, 0
    v_mov_b32 v{vO+3}, 0
    s_mov_b32 s{sSpin}, 0
    L_qwait:
    ds_read_b32 v{vT}, v{vFl}
    s_add_u32 s{sSpin}, s{sSpin}, 1
    s_cmp_ge_u32 s{sSpin}, {1 << 20}
    s_cbranch_scc1 L_end
    s_waitcnt lgkmcnt(0)
    v_readfirstlane_b32 s{sT0}, v{vT}
    s_sleep 1
    s_cmp_eq_u32 s{sT0}, 0
    s_cbranch_scc1 L_qwait
    """)
    for j in range(4):
        e(f"ds_read_b128 {vr(vQ+4*j)}, v{vA} offset:{j*64}")
    e(f"""
    L_cwait0:
    s_mov_b32 s{sSpin}, 0
    L_cwait:
    ds_read_b64 v[{vLF}:{vLF+1}], v{vFl} offset:16
    s_add_u32 s{sSpin}, s{sSpin}, 1
    s_cmp_ge_u32 s{sSpin}, {1 << 20}
    s_cbranch_scc1 L_end
    s_waitcnt lgkmcnt(0)
    v_readfirstlane_b32 s{sLanded}, v{vLF}
    v_readfirstlane_b32 s{sFinal}, v{vLF+1}
    s_nop 2
    s_cmp_gt_i32 s{sLanded}, s{sTc}
    s_cbranch_scc1 L_go
    s_cmp_ge_u32 s{sTc}, s{sFinal}
    s_cbranch_scc1 L_done
    """)
    if cfg.csleep:
        e(f"s_sleep {cfg.csleep}")
    e(f"""
    s_branch L_cwait
    L_go:
    s_cmp_eq_u32 s{sCn}, s{sSwc}
    s_cbranch_scc1 L_switch
    L_body:
    """)
    for j in range(4):
        e(f"v_add_u32 v{vA+j}, s{sCrel}, v{vKl+j}")
    e(f"v_add_u32 v{vA+4}, s{sCrel}, v{vVl}")
    for j in range(4):
        e(f"ds_read_b128 {vr(vK+4*j)}, v{vA+j}")
    for r in range(4):
        e(f"ds_read_b128 {vr(vV+4*r)}, v{vA+4} offset:{r*256}")
    e(f"""
    s_add_u32 s{sCrel}, s{sCrel}, 32768
    s_and_b32 s{sCrel}, s{sCrel}, {RING-1}
    s_add_u32 s{sTc}, s{sTc}, 4
    s_add_u32 s{sCn}, s{sCn}, 1
    v_mov_b32 v{vLF}, s{sCn}
    """)
    for j in range(4):
        e(f"s_waitcnt lgkmcnt({7-j})")
        c = "0" if j == 0 else vr(vS)
        e(f"v_mfma_f32_16x16x32_bf16 {vr(vS)}, {vr(vK+4*j)}, {vr(vQ+4*j)}, {c}")
    e(f"""
    s_waitcnt lgkmcnt(0)
    ds_write_b32 v{vPg}, v{vLF}
    s_nop 5
    v_max3_f32 v{vT}, v{vS}, v{vS+1}, v{vS+2}
    v_max_f32 v{vT}, v{vT}, v{vS+3}
    v_mov_b32 v{vU}, v{vT}
    s_nop 1
    v_permlane32_swap_b32 v{vT}, v{vU}
    v_max_f32 v{vT}, v{vT}, v{vU}
    v_mov_b32 v{vU}, v{vT}
    s_nop 1
    v_permlane16_swap_b32 v{vT}, v{vU}
    v_max_f32 v{vT}, v{vT}, v{vU}
    v_mul_f32 v{vT}, s{sC}, v{vT}
    v_max_f32 v{vMn}, v{vM}, v{vT}
    v_sub_f32 v{vAl}, v{vM}, v{vMn}
    """)
    for r in range(4):
        e(f"v_fma_f32 v{vPp+r}, v{vS+r}, s{sC}, -v{vMn}")
    e(f"v_exp_f32 v{vAl}, v{vAl}")
    for r in range(4):
        e(f"v_exp_f32 v{vPp+r}, v{vPp+r}")
    e(f"v_mov_b32 v{vM}, v{vMn}")
    e(f"v_cvt_pk_bf16_f32 v{vW}, v{vPp}, v{vPp+1}")
    e(f"v_cvt_pk_bf16_f32 v{vW+1}, v{vPp+2}, v{vPp+3}")
    for r in range(4):
        e(f"v_mul_f32 v{vO+r}, v{vAl}, v{vO+r}")
    perms(vB, vW, False)
    perms(vB + 4, vW, True)
    e(f"v_mfma_f32_16x16x32_bf16 {vr(vO)}, {vr(vV)}, {vr(vB)}, {vr(vO)}")
    perms(vB + 8, vW + 1, False)
    e(f"v_mfma_f32_16x16x32_bf16 {vr(vO)}, {vr(vV+4)}, {vr(vB+4)}, {vr(vO)}")
    perms(vB + 12, vW + 1, True)
    e(f"""
    v_mfma_f32_16x16x32_bf16 {vr(vO)}, {vr(vV+8)}, {vr(vB+8)}, {vr(vO)}
    v_fma_f32 v{vLs}, v{vLs}, v{vAl}, v{vPp}
    v_add_f32 v{vPp+1}, v{vPp+1}, v{vPp+2}
    v_mfma_f32_16x16x32_bf16 {vr(vO)}, {vr(vV+12)}, {vr(vB+12)}, {vr(vO)}
    v_add_f32 v{vLs}, v{vLs}, v{vPp+3}
    v_add_f32 v{vLs}, v{vLs}, v{vPp+1}
    s_cmp_gt_i32 s{sLanded}, s{sTc}
    s_cbranch_scc1 L_go
    s_branch L_cwait0
    """)

    def flush(mat):
        e(f"""
        s_nop 7
        ds_write_b128 v{vMOa}, {vr(vO)} offset:{mat*4096}
        ds_write_b64 v{vMLa}, v[{vM}:{vM+1}] offset:{mat*2048}
        v_mov_b32 v{vT}, 1
        s_waitcnt lgkmcnt(0)
        s_mov_b64 exec, 1
        ds_add_u32 v{vFl}, v{vT} offset:{4+4*mat}
        s_mov_b64 exec, -1
        """)
    e("L_switch:")
    flush(0)
    for j in range(4):
        e(f"ds_read_b128 {vr(vQ+4*j)}, v{vQa} offset:{512+j*64}")
    e(f"""
    v_mov_b32 v{vM}, 0xff800000
    v_mov_b32 v{vLs}, 0
    v_mov_b32 v{vO}, 0
    v_mov_b32 v{vO+1}, 0
    v_mov_b32 v{vO+2}, 0
    v_mov_b32 v{vO+3}, 0
    s_waitcnt lgkmcnt(0)
    s_branch L_body
    L_done:
    """)
    flush(1)
    e("s_endpgm")

    sMat, sI, sCb, sRbk, sSpin, sTrig = range(56, 62)
    sAct, sHd, sPc = 62, 64, 66
    sSel = 68
    sOH1p, sOMLp, sOH1, sOML = 72, 73, 74, 75
    sOH2 = 32
    vX = 20
    vAo = 38
    vAcc, vAcc2, vE = 44, 48, 52
    vWq = vWo = 60
    vWo2 = 124
    vGa = 188
    vGm = 204
    vBc = 208
    vH1p, vMLp, vH1g, vMLg, vH2p, vH2q, vH2g, vWoO, vMOr, vMLr, vFs, vOut, vTag, vSelM = range(216, 230)
    NV = 230
    e(f"""
    L_service:
    s_setprio 3
    v_mov_b32 v{vFs}, {L_FL}
    v_mov_b32 v{vT}, 0
    v_mov_b32 v{vT+1}, 0
    v_mov_b32 v{vT+2}, 0
    v_mov_b32 v{vT+3}, 0
    v_mov_b32 v{vT+4}, 0
    v_mov_b32 v{vT+5}, {BIG:#x}
    ds_write_b128 v{vFs}, {vr(vT)}
    ds_write_b128 v{vFs}, {vr(vT)} offset:32
    ds_write_b64 v{vFs}, v[{vT+4}:{vT+5}] offset:16
    """)
    if cfg.mode in ("ldonly", "wqonly"):
        e(f"""
        v_mov_b32 v{vE}, 1000
        v_mov_b32 v{vE+1}, 1000
        v_mov_b32 v{vE+2}, 1000
        v_mov_b32 v{vE+3}, 1000
        ds_write_b128 v{vFs}, {vr(vE)} offset:32
        """)
    if cfg.mode == "ldonly":
        e("""
        s_waitcnt lgkmcnt(0)
        s_barrier
        s_endpgm
        """)
    if cfg.codepf:
        e(f"""
        s_getpc_b64 {sp(sPc)}
        L_pc:
        s_sub_u32 s{sPc}, s{sPc}, L_pc-{NAME}_kernel
        s_subb_u32 s{sPc+1}, s{sPc+1}, 0
        v_lshlrev_b32 v{vAo}, 6, v{vL}
        v_add_u32 v{vAo+1}, 4096, v{vAo}
        v_add_u32 v{vAo+5}, 8192, v{vAo}
        v_min_u32 v{vAo+1}, L_codeend-{NAME}_kernel-4, v{vAo+1}
        v_min_u32 v{vAo+5}, L_codeend-{NAME}_kernel-4, v{vAo+5}
        global_load_dword v{vH1p}, v{vAo}, {sp(sPc)}
        global_load_dword v{vMLp}, v{vAo+1}, {sp(sPc)}
        global_load_dword v{vH1g}, v{vAo+5}, {sp(sPc)}
        """)
    e(f"""
    v_lshrrev_b32 v{vT+6}, 3, v{vL}
    v_and_b32 v{vT+7}, 7, v{vL}
    s_and_b32 s{sT0}, s{sJ}, 1
    s_mul_i32 s{sT0}, s{sT0}, 288
    v_mul_u32_u24 v{vAo+2}, 36, v{vT+6}
    v_add_u32 v{vAo+2}, s{sT0}, v{vAo+2}
    v_lshlrev_b32 v{vAo+3}, 13, v{vAo+2}
    v_lshlrev_b32 v{vAo+2}, 1, v{vAo+2}
    v_lshl_add_u32 v{vAo+3}, v{vT+7}, 4, v{vAo+3}
    s_bfe_u32 s{sT0}, s{sJ}, 0x20001
    s_lshl_b32 s{sT0}, s{sT0}, 7
    s_lshl_b32 s{sT1}, s{sH}, 9
    s_add_u32 s{sT0}, s{sT0}, s{sT1}
    v_add_u32 v{vAo+3}, s{sT0}, v{vAo+3}
    s_mov_b32 s{rK+2}, 4718592
    s_mov_b32 s{rK+3}, 0x20000
    s_mov_b32 s{rV+2}, 1152
    s_mov_b32 s{rV+3}, 0x20000
    s_mov_b32 s{sI}, 0
    s_lshl_b32 s{sT0}, s{sH}, 8
    s_add_u32 s{sT0}, s{sT0}, {WS_CNT}
    s_cmp_eq_u32 s{sJ}, 8
    s_cselect_b32 s{sT0}, s{sT0}, {WS_SZ:#x}
    v_mov_b32 v{vAo+4}, s{sT0}
    s_mov_b32 s{rWS+2}, {WS_SZ:#x}
    s_mov_b32 s{rWS+3}, 0x20000
    s_cmp_ge_u32 s{sJ}, 8
    s_waitcnt lgkmcnt(0)
    s_cselect_b32 s{rV}, s{sBx}, s{sAx}
    s_cselect_b32 s{rV+1}, s{sBx+1}, s{sAx+1}
    s_cselect_b32 s{rK}, s{sBwq}, s{sAwq}
    s_cselect_b32 s{rK+1}, s{sBwq+1}, s{sAwq+1}
    s_mov_b32 s{rWS}, s{sWs}
    s_mov_b32 s{rWS+1}, s{sWs+1}
    s_load_dword s{sE}, {sp(sWs)}, 0
    s_mov_b64 exec, 1
    buffer_store_dword v{vT}, v{vAo+4}, {srd(rWS)}, 0 offen sc1
    s_mov_b64 exec, -1
    """)
    for t in range(4):
        e(f"buffer_load_dwordx4 {vr(vX+4*t)}, v{vAo+2}, {srd(rV)}, 0 offen offset:{16*t}")
    e(f"buffer_load_dwordx2 v[{vX+16}:{vX+17}], v{vAo+2}, {srd(rV)}, 0 offen offset:64")
    for i in range(36):
        e(f"buffer_load_dwordx4 {vr(vWq+4*i)}, v{vAo+3}, {srd(rK)}, s{sI} offen {cfg.wpol}")
        if i < 35:
            e(f"s_add_u32 s{sI}, s{sI}, 8192")
    e("s_barrier")
    if cfg.mode == "wqonly":
        e("s_endpgm")
    selectors()
    for j in range(4):
        e(f"s_mov_b32 s{sSel+j}, {0x07060500+j:#x}")
    e(f"""
    v_and_b32 v{vT+7}, 7, v{vL}
    v_lshlrev_b32 v{vAo}, 4, v{vT+7}
    v_lshl_add_u32 v{vAo}, v{vG}, 7, v{vAo}
    s_lshl_b32 s{sT0}, s2, 8
    s_add_u32 s{sT0}, s{sT0}, {WS_QM}
    v_add_u32 v{vAo}, s{sT0}, v{vAo}
    s_lshl_b32 s{sT0}, s{sH}, 12
    s_add_u32 s{sT0}, s{sT0}, {WS_QM}
    v_lshlrev_b32 v{vAo+1}, 4, v{vL}
    v_add_u32 v{vAo+1}, s{sT0}, v{vAo+1}
    """)
    e(f"""
    v_and_b32 v{vT}, 1, v{vG}
    v_lshrrev_b32 v{vT+1}, 1, v{vG}
    v_lshl_add_u32 v{vT}, v{vT}, 1, v{vT+1}
    v_lshlrev_b32 v{vT}, 7, v{vT}
    v_lshl_add_u32 v{vT}, v{vT+7}, 4, v{vT}
    v_bfe_u32 v{vT+1}, v{vL}, 3, 1
    v_lshl_add_u32 v{vT}, v{vT+1}, 3, v{vT}
    v_add_u32 v{vAo+2}, {L_Q}, v{vT}
    s_waitcnt vmcnt(36)
    """)
    perms(vE, vX, False)
    for i in range(36):
        if i + 1 < 36:
            perms(vE + 4 * ((i + 1) & 1), vX + (i + 1) // 2, (i + 1) & 1)
        e(f"s_waitcnt vmcnt({35-i})")
        if i == 35:
            e("s_nop 0")
        c = "0" if i == 0 else vr(vAcc)
        e(f"v_mfma_f32_16x16x32_bf16 {vr(vAcc)}, {vr(vE+4*(i&1))}, {vr(vWq+4*i)}, {c}")
    e(f"""
    s_waitcnt lgkmcnt(0)
    s_add_u32 s{sE}, s{sE}, 0x01010101
    v_mov_b32 v{vTag}, s{sE}
    s_nop 4
    """)
    for r in range(4):
        e(f"v_permlane32_swap_b32 v{vAcc+r}, v{vAcc2+r}")
    e("s_nop 1")
    for r in range(4):
        e(f"v_add_f32_dpp v{vAcc+r}, v{vAcc2+r}, v{vAcc+r} row_ror:8 {DPP}")
    def tagquad(dst, src):
        for r in range(4):
            e(f"v_perm_b32 v{dst+r}, v{src+r}, v{vTag}, s{sSel+r}")
    tagquad(vE, vAcc)
    e(f"""
    s_mov_b64 exec, 0x00ff00ff
    buffer_store_dwordx4 {vr(vE)}, v{vAo}, {srd(rWS)}, 0 offen sc1
    s_mov_b64 exec, -1
    """)
    stamp(1)

    def check(r):
        for j in range(4):
            e(f"v_cmpx_eq_u32_sdwa vcc, v{r+j}, v{vTag} src0_sel:BYTE_0 src1_sel:BYTE_{j}")

    def spin_guard(code):
        e(f"""
        s_add_u32 s{sSpin}, s{sSpin}, 1
        s_mov_b32 s{sT0}, {code}
        s_cmp_ge_u32 s{sSpin}, {cfg.spin}
        s_cbranch_scc1 L_fail
        """)

    def poll(label, loads, regs, code, act=None):
        e(f"s_mov_b32 s{sSpin}, 0")
        e(f"{label}:")
        if act:
            e(f"s_mov_b64 exec, {act}")
        for ins in loads:
            e(ins)
        spin_guard(code)
        n = len(regs)
        for k, r in enumerate(regs):
            e(f"s_waitcnt vmcnt({n-1-k})")
            check(r)
        e(f"""
        s_nop 3
        s_cmp_eq_u64 exec, {act if act else -1}
        s_mov_b64 exec, -1
        s_cbranch_scc0 {label}
        """)

    def qsum(mat):
        a, b = vGa + 8 * mat, vGa + 8 * mat + 4
        for r in range(4):
            e(f"v_permlane16_swap_b32 v{a+r}, v{b+r}")
        for r in range(4):
            e(f"v_add_f32 v{a+r}, v{a+r}, v{b+r}")
        e(f"""
        v_cvt_pk_bf16_f32 v{a}, v{a}, v{a+1}
        v_cvt_pk_bf16_f32 v{a+1}, v{a+2}, v{a+3}
        ds_write_b64 v{vAo+2}, v[{a}:{a+1}] offset:{mat*512}
        """)
    def qload(k): return f"buffer_load_dwordx4 {vr(vGa+4*k)}, v{vAo+1}, {srd(rWS)}, 0 offen offset:{k*1024} sc1"
    e(f"""
    s_cmp_eq_u32 s{sIsA}, 1
    s_cbranch_scc0 L_pqb0
    """)
    poll("L_pqa", [qload(k) for k in range(4)], [vGa + 4 * k for k in range(4)], 1)
    qsum(0)
    e("s_branch L_pqc")
    e("L_pqb0:")
    poll("L_pqb", [qload(k) for k in (2, 3)], [vGa + 8, vGa + 12], 2)
    e("L_pqc:")
    qsum(1)
    e(f"""
    v_mov_b32 v{vT}, 1
    s_waitcnt lgkmcnt(0)
    ds_write_b32 v{vFs}, v{vT}
    """)
    stamp(2)
    if cfg.mode == "s2":
        e("s_endpgm")
    e(f"""
    s_lshr_b32 s{sRbk}, s{sJ}, 2
    s_and_b32 s{sCb}, s{sJ}, 3
    s_lshl_b32 s{sT2}, s{sH}, 2
    s_add_u32 s{sT2}, s{sT2}, s{sRbk}
    v_and_b32 v{vT}, 1, v{vG}
    v_lshrrev_b32 v{vT+1}, 1, v{vG}
    v_and_b32 v{vT+2}, 7, v{vL}
    v_bfe_u32 v{vT+3}, v{vL}, 3, 1
    v_and_b32 v{vT+6}, 3, v{vL}
    v_lshlrev_b32 v{vT+7}, 4, v{vL}
    """)
    e(f"""
    v_lshlrev_b32 v{vT+4}, 2, v{vT}
    v_lshl_add_u32 v{vT+4}, v{vT+1}, 5, v{vT+4}
    s_lshl_b32 s{sT1}, s{sT2}, 6
    v_add_u32 v{vT+4}, s{sT1}, v{vT+4}
    v_mul_u32_u24 v{vT+4}, 1152, v{vT+4}
    v_lshl_add_u32 v{vT+4}, v{vP}, 4, v{vT+4}
    s_lshl_b32 s{sT1}, s{sCb}, 8
    v_add_u32 v{vWoO}, s{sT1}, v{vT+4}
    """)
    e(f"""
    s_lshl_b32 s{sT1}, s{sT2}, 12
    s_add_u32 s{sT1}, s{sT1}, {WS_H1}
    v_lshrrev_b32 v{vT+4}, 2, v{vL}
    v_lshlrev_b32 v{vT+4}, 8, v{vT+4}
    v_lshl_add_u32 v{vT+4}, v{vT+6}, 4, v{vT+4}
    v_add_u32 v{vH1g}, s{sT1}, v{vT+4}
    s_lshl_b32 s{sT1}, s{sH}, 10
    s_add_u32 s{sT1}, s{sT1}, {WS_ML}
    v_add_u32 v{vMLg}, s{sT1}, v{vT+7}
    v_lshlrev_b32 v{vT+4}, 4, v{vT+6}
    v_add_u32 v{vMLp}, s{sT1}, v{vT+4}
    """)
    e(f"""
    v_lshl_add_u32 v{vT+4}, v{vT+3}, 1, v{vT+1}
    v_lshlrev_b32 v{vT+4}, 12, v{vT+4}
    v_lshl_add_u32 v{vT+5}, v{vT}, 3, v{vT+2}
    v_lshl_add_u32 v{vT+4}, v{vT+5}, 4, v{vT+4}
    s_lshl_b32 s{sT0}, s{sH}, 14
    s_add_u32 s{sT0}, s{sT0}, {WS_H1}
    v_add_u32 v{vH1p}, s{sT0}, v{vT+4}
    v_lshlrev_b32 v{vT+4}, 1, v{vT+3}
    v_add_u32 v{vSelM}, 0x07060500, v{vT+4}
    """)
    e(f"""
    s_lshl_b32 s{sT0}, s{sT2}, 6
    s_add_u32 s{sT0}, s{sT0}, {WS_H2}
    v_lshlrev_b32 v{vT+5}, 4, v{vT+6}
    v_add_u32 v{vT+5}, s{sT0}, v{vT+5}
    v_lshrrev_b32 v{vT+4}, 2, v{vL}
    v_lshl_add_u32 v{vT+4}, v{vT+4}, 12, v{vT+5}
    s_lshl_b32 s{sT1}, s{sCb}, 15
    v_add_u32 v{vH2p}, s{sT1}, v{vT+4}
    v_bfe_u32 v{vT+4}, v{vL}, 2, 1
    v_lshl_add_u32 v{vT+4}, v{vG}, 1, v{vT+4}
    v_lshl_add_u32 v{vT+4}, v{vT+4}, 12, v{vT+5}
    v_add_u32 v{vH2q}, {32*4096}, v{vT+4}
    s_lshl_b32 s{sT0}, s2, 12
    s_add_u32 s{sT0}, s{sT0}, {WS_H2}
    v_add_u32 v{vH2g}, s{sT0}, v{vT+7}
    v_add_u32 v{vMOr}, {L_MO}, v{vT+7}
    v_lshlrev_b32 v{vT+4}, 3, v{vL}
    v_add_u32 v{vMLr}, {L_MML}, v{vT+4}
    """)
    e(f"""
    s_lshr_b32 s{sT0}, s2, 3
    s_lshl_b32 s{sT0}, s{sT0}, 7
    s_and_b32 s{sT1}, s2, 3
    s_bfe_u32 s{sI}, s2, 0x10002
    s_cmp_ge_u32 s2, 32
    s_cbranch_scc0 L_ob
    s_and_b32 s{sT1}, s2, 1
    s_bfe_u32 s{sI}, s2, 0x10001
    L_ob:
    s_lshl_b32 s{sT1}, s{sT1}, 5
    s_lshl_b32 s{sI}, s{sI}, 2
    s_add_u32 s{sT0}, s{sT0}, s{sT1}
    s_add_u32 s{sT0}, s{sT0}, s{sI}
    v_lshl_add_u32 v{vT+4}, v{vT+6}, 3, v{vG}
    v_add_u32 v{vT+4}, s{sT0}, v{vT+4}
    v_lshlrev_b32 v{vOut}, 1, v{vT+4}
    s_mov_b32 s{rK}, s{sAwo}
    s_mov_b32 s{rK+1}, s{sAwo+1}
    s_mov_b32 s{rO}, s{sOut}
    s_mov_b32 s{rO+1}, s{sOut+1}
    s_mov_b32 s{rO+2}, 2304
    s_mov_b32 s{rO+3}, 0x20000
    s_mov_b32 s{sMat}, 0
    s_lshl_b32 s{sOH1p}, s{sRbk}, 8
    s_lshl_b32 s{sOMLp}, s{sRbk}, 6
    s_mov_b32 s{sOH1}, 0
    s_mov_b32 s{sOML}, 0
    s_mov_b32 s{sOH2}, 0
    s_mov_b32 s{sAct}, 0xffff
    s_mov_b32 s{sAct+1}, 0
    s_cmp_ge_u32 s{sJ}, 8
    s_cselect_b64 {sp(sHd)}, -1, 0
    s_mov_b32 s{sTrig}, {cfg.trigB}
    s_cmp_eq_u32 s{sIsA}, 1
    s_cselect_b32 s{sTrig}, {cfg.trigA}, s{sTrig}
    L_mat:
    s_mov_b32 s{sSpin}, 0
    L_wtrig:
    ds_read_b64 v[{vT}:{vT+1}], v{vFs} offset:16
    s_add_u32 s{sSpin}, s{sSpin}, 1
    s_mov_b32 s{sT0}, 3
    s_cmp_ge_u32 s{sSpin}, {1 << 20}
    s_cbranch_scc1 L_fail
    s_waitcnt lgkmcnt(0)
    v_readfirstlane_b32 s{sT0}, v{vT}
    v_readfirstlane_b32 s{sT1}, v{vT+1}
    s_sleep 1
    s_cmp_ge_i32 s{sT0}, s{sTrig}
    s_cbranch_scc1 L_wo
    s_cmp_eq_u32 s{sT1}, {BIG:#x}
    s_cbranch_scc1 L_wtrig
    L_wo:
    """)
    def rowconst(i): return 8 * (i & 3) + (i >> 2)
    for i in range(16):
        e(f"s_mov_b32 s{sI}, {rowconst(i)*1152}")
        e(f"buffer_load_dwordx4 {vr(vWo+4*i)}, v{vWoO}, {srd(rK)}, s{sI} offen {cfg.wpol}")
    e(f"""
    s_cmp_eq_u32 s{sCb}, 3
    s_cbranch_scc0 L_now2
    s_mov_b32 exec_lo, 0x00ff00ff
    s_mov_b32 exec_hi, 0x00ff00ff
    """)
    for i in range(16):
        e(f"s_mov_b32 s{sI}, {rowconst(i)*1152}")
        e(f"buffer_load_dwordx4 {vr(vWo2+4*i)}, v{vWoO}, {srd(rK)}, s{sI} offen offset:256 {cfg.wpol}")
    e(f"""
    s_mov_b64 exec, -1
    L_now2:
    s_or_b32 s{sT0}, s{sMat}, s{sIsA}
    s_cmp_eq_u32 s{sT0}, 0
    s_cbranch_scc1 L_gather
    s_mov_b32 s{sSpin}, 0
    s_lshl_b32 s{sT0}, s{sMat}, 2
    v_add_u32 v{vT+2}, s{sT0}, v{vFs}
    L_wcnt:
    ds_read_b32 v{vT}, v{vT+2} offset:4
    s_add_u32 s{sSpin}, s{sSpin}, 1
    s_mov_b32 s{sT0}, 4
    s_cmp_ge_u32 s{sSpin}, {1 << 20}
    s_cbranch_scc1 L_fail
    s_waitcnt lgkmcnt(0)
    v_readfirstlane_b32 s{sT1}, v{vT}
    s_nop 3
    s_cmp_eq_u32 s{sT1}, 4
    s_cbranch_scc0 L_wcnt
    """)
    stamp(5)
    vMo, vMl = vGa, vX
    for w in range(4):
        e(f"ds_read_b64 v[{vMl+2*w}:{vMl+2*w+1}], v{vMLr} offset:{w*512}")
    for w in range(4):
        e(f"ds_read_b128 {vr(vMo+4*w)}, v{vMOr} offset:{w*1024}")
    e(f"""
    s_waitcnt lgkmcnt(0)
    v_max3_f32 v{vAcc}, v{vMl}, v{vMl+2}, v{vMl+4}
    v_max_f32 v{vAcc}, v{vAcc}, v{vMl+6}
    v_perm_b32 v{vAcc}, v{vAcc}, v{vTag}, v{vSelM}
    """)
    for w in range(4):
        e(f"v_sub_f32 v{vMl+2*w}, v{vMl+2*w}, v{vAcc}")
    for w in range(4):
        e(f"v_exp_f32 v{vMl+2*w}, v{vMl+2*w}")
    e(f"v_mov_b32_dpp v{vAcc+2}, v{vAcc} row_ror:8 {DPP}")
    e(f"v_mul_f32 v{vAcc+1}, v{vMl}, v{vMl+1}")
    for r in range(4):
        e(f"v_mul_f32 v{vAcc2+r}, v{vMl}, v{vMo+r}")
    for w in range(1, 4):
        e(f"v_fmac_f32 v{vAcc+1}, v{vMl+2*w}, v{vMl+2*w+1}")
        for r in range(4):
            e(f"v_fmac_f32 v{vAcc2+r}, v{vMl+2*w}, v{vMo+4*w+r}")
    e(f"v_mov_b32 v{vT}, v{vAcc+1}")
    tagquad(vE, vAcc2)
    e(f"""
    buffer_store_dwordx4 {vr(vE)}, v{vH1p}, {srd(rWS)}, s{sOH1p} offen sc1
    v_permlane32_swap_b32 v{vAcc+1}, v{vT}
    v_add_f32 v{vAcc+1}, v{vAcc+1}, v{vT}
    v_mov_b32 v{vT}, v{vAcc+1}
    s_nop 1
    v_permlane16_swap_b32 v{vAcc+1}, v{vT}
    v_add_f32 v{vAcc+1}, v{vAcc+1}, v{vT}
    s_nop 1
    v_mov_b32_dpp v{vAcc+3}, v{vAcc+1} row_ror:8 {DPP}
    v_perm_b32 v{vAcc+1}, v{vAcc+1}, v{vTag}, s{sSel+1}
    v_perm_b32 v{vAcc+3}, v{vAcc+3}, v{vTag}, s{sSel+3}
    s_mov_b64 exec, 0xf
    buffer_store_dwordx4 {vr(vAcc)}, v{vMLp}, {srd(rWS)}, s{sOMLp} offen sc1
    s_mov_b64 exec, -1
    L_gather:
    """)
    e(f"""
    v_mov_b32 v{vGm}, 0xff800000
    v_mov_b32 v{vGm+1}, 0
    v_mov_b32 v{vGm+2}, 0xff800000
    v_mov_b32 v{vGm+3}, 0
    """)
    for r in range(16):
        e(f"v_mov_b32 v{vGa+r}, 0")
    poll("L_p1",
         [f"buffer_load_dwordx4 {vr(vGm)}, v{vMLg}, {srd(rWS)}, s{sOML} offen sc1"] +
         [f"buffer_load_dwordx4 {vr(vGa+4*k)}, v{vH1g}, {srd(rWS)}, s{sOH1} offen offset:{k*64} sc1" for k in range(4)],
         [vGm] + [vGa + 4 * k for k in range(4)], 5, act=sp(sAct))
    stamp(6)
    def allred(op, r, t):
        e(f"""
        s_nop 1
        {op}_dpp v{r}, v{r}, v{r} row_ror:4 {DPP}
        s_nop 1
        {op}_dpp v{r}, v{r}, v{r} row_ror:8 {DPP}
        v_mov_b32 v{t}, v{r}
        s_nop 1
        v_permlane16_swap_b32 v{r}, v{t}
        {op} v{r}, v{r}, v{t}
        v_mov_b32 v{t}, v{r}
        s_nop 1
        v_permlane32_swap_b32 v{r}, v{t}
        {op} v{r}, v{r}, v{t}
        """)
    e(f"""
    v_cndmask_b32 v{vGm}, v{vGm}, v{vGm+2}, {sp(sHd)}
    v_cndmask_b32 v{vGm+1}, v{vGm+1}, v{vGm+3}, {sp(sHd)}
    v_mov_b32 v{vT}, v{vGm}
    """)
    allred("v_max_f32", vT, vT + 1)
    e(f"""
    v_sub_f32 v{vGm}, v{vGm}, v{vT}
    v_exp_f32 v{vGm}, v{vGm}
    s_nop 0
    v_mul_f32 v{vT}, v{vGm}, v{vGm+1}
    """)
    for r in range(16):
        e(f"v_mul_f32 v{vGa+r}, v{vGm}, v{vGa+r}")
    for k in range(2):
        for v in range(4):
            e(f"v_permlane32_swap_b32 v{vGa+4*k+v}, v{vGa+4*(k+2)+v}")
    for k in range(2):
        for v in range(4):
            e(f"v_add_f32 v{vGa+4*k+v}, v{vGa+4*k+v}, v{vGa+4*(k+2)+v}")
    e(f"v_add_f32_dpp v{vT}, v{vT}, v{vT} row_ror:4 {DPP}")
    e("s_nop 0")
    for v in range(4):
        e(f"v_permlane16_swap_b32 v{vGa+v}, v{vGa+4+v}")
    e(f"v_add_f32_dpp v{vT}, v{vT}, v{vT} row_ror:8 {DPP}")
    for v in range(4):
        e(f"v_add_f32 v{vGa+v}, v{vGa+v}, v{vGa+4+v}")
    e(f"v_mov_b32 v{vT+1}, v{vT}")
    for v in range(4):
        e(f"v_add_f32_dpp v{vGa+v}, v{vGa+v}, v{vGa+v} row_ror:4 {DPP}")
    e(f"""
    v_permlane16_swap_b32 v{vT}, v{vT+1}
    v_add_f32 v{vT}, v{vT}, v{vT+1}
    v_mov_b32 v{vT+1}, v{vT}
    """)
    for v in range(4):
        e(f"v_add_f32_dpp v{vGa+v}, v{vGa+v}, v{vGa+v} row_ror:8 {DPP}")
    e(f"""
    v_permlane32_swap_b32 v{vT}, v{vT+1}
    v_add_f32 v{vT}, v{vT}, v{vT+1}
    v_rcp_f32 v{vT}, v{vT}
    s_nop 0
    """)
    for v in range(4):
        e(f"v_mul_f32 v{vGa+v}, v{vT}, v{vGa+v}")
    e(f"""
    v_cvt_pk_bf16_f32 v{vGa}, v{vGa}, v{vGa+1}
    v_cvt_pk_bf16_f32 v{vGa+1}, v{vGa+2}, v{vGa+3}
    s_nop 0
    """)
    for t in range(4):
        for hlf in range(2):
            e(f"v_mov_b32_dpp v{vBc+2*t+hlf}, v{vGa+hlf} quad_perm:[{t},{t},{t},{t}] {DPP}")
    def oproj(two):
        def src(i): return vBc + 2 * (i >> 2) + ((i & 3) >> 1)
        perms(vE, src(0), False)
        for i in range(16):
            if i + 1 < 16:
                perms(vE + 4 * ((i + 1) & 1), src(i + 1), (i + 1) & 1)
            else:
                e("s_nop 1")
            c = "0" if i == 0 else vr(vAcc)
            e(f"v_mfma_f32_16x16x32_bf16 {vr(vAcc)}, {vr(vE+4*(i&1))}, {vr(vWo+4*i)}, {c}")
            if two:
                c = "0" if i == 0 else vr(vAcc2)
                e(f"v_mfma_f32_16x16x32_bf16 {vr(vAcc2)}, {vr(vE+4*(i&1))}, {vr(vWo2+4*i)}, {c}")
        e("s_nop 7")
    e(f"""
    s_cmp_eq_u32 s{sCb}, 3
    s_cbranch_scc1 L_op2
    """)
    oproj(False)
    e("s_branch L_op3")
    e("L_op2:")
    oproj(True)
    tagquad(vX + 4, vAcc2)
    e(f"""
    s_mov_b64 exec, 0x00ff00ff
    buffer_store_dwordx4 {vr(vX+4)}, v{vH2q}, {srd(rWS)}, s{sOH2} offen sc1
    s_mov_b64 exec, -1
    L_op3:
    """)
    tagquad(vX, vAcc)
    e(f"""
    s_mov_b32 exec_hi, 0
    buffer_store_dwordx4 {vr(vX)}, v{vH2p}, {srd(rWS)}, s{sOH2} offen sc1
    s_mov_b64 exec, -1
    """)
    stamp(7)
    e(f"""
    s_cmp_lt_u32 s2, 36
    s_cbranch_scc0 L_nored
    """)
    poll("L_p2",
         [f"buffer_load_dwordx4 {vr(vGa+4*k)}, v{vH2g}, {srd(rWS)}, s{sOH2} offen offset:{k*1024} sc1" for k in range(4)],
         [vGa + 4 * k for k in range(4)], 6)
    for st in (2, 1):
        for k in range(st):
            for v in range(4):
                e(f"v_add_f32 v{vGa+4*k+v}, v{vGa+4*k+v}, v{vGa+4*(k+st)+v}")
    e(f"""
    s_mul_i32 s{sT0}, s{sMat}, 1152
    s_nop 0
    v_permlane32_swap_b32 v{vGa}, v{vGa+2}
    v_permlane32_swap_b32 v{vGa+1}, v{vGa+3}
    v_add_f32 v{vGa}, v{vGa}, v{vGa+2}
    v_add_f32 v{vGa+1}, v{vGa+1}, v{vGa+3}
    s_nop 1
    v_permlane16_swap_b32 v{vGa}, v{vGa+1}
    v_add_f32 v{vGa}, v{vGa}, v{vGa+1}
    s_nop 1
    v_add_f32_dpp v{vGa}, v{vGa}, v{vGa} row_ror:4 {DPP}
    s_nop 1
    v_add_f32_dpp v{vGa}, v{vGa}, v{vGa} row_ror:8 {DPP}
    v_cvt_pk_bf16_f32 v{vGa}, v{vGa}, v{vGa}
    s_mov_b32 exec_lo, 0x000f000f
    s_mov_b32 exec_hi, 0x000f000f
    buffer_store_short v{vGa}, v{vOut}, {srd(rO)}, s{sT0} offen
    s_mov_b64 exec, -1
    L_nored:
    s_cmp_eq_u32 s{sMat}, 1
    s_cbranch_scc1 L_fin
    """)
    stamp(4)
    if cfg.stamps:
        e(f"""
        s_waitcnt lgkmcnt(0)
        s_mov_b32 s{sStamp+6}, s{sStamp+12}
        s_mov_b32 s{sStamp+7}, s{sStamp+13}
        """)
    e(f"""
    s_mov_b32 s{sMat}, 1
    s_mov_b32 s{rK}, s{sBwo}
    s_mov_b32 s{rK+1}, s{sBwo+1}
    s_lshl_b32 s{sOH1p}, s{sJ}, 8
    s_add_u32 s{sOH1p}, s{sOH1p}, {H1_M}
    s_lshl_b32 s{sOMLp}, s{sJ}, 6
    s_add_u32 s{sOMLp}, s{sOMLp}, {ML_M}
    s_mov_b32 s{sOH1}, {H1_M}
    s_mov_b32 s{sOML}, {ML_M}
    s_mov_b32 s{sOH2}, {H2_M}
    s_mov_b64 {sp(sAct)}, -1
    s_mov_b32 s{sTrig}, {BIG:#x}
    v_add_u32 v{vMOr}, 4096, v{vMOr}
    v_add_u32 v{vMLr}, 2048, v{vMLr}
    s_branch L_mat
    L_fin:
    s_cmp_eq_u32 s2, 0
    s_cbranch_scc0 L_fin2
    v_mov_b32 v{vT}, 0
    s_mov_b64 exec, 1
    buffer_store_dword v{vTag}, v{vT}, {srd(rWS)}, 0 offen sc1
    s_mov_b64 exec, -1
    L_fin2:
    """)
    if cfg.pad:
        e(f"""
        L_pad:
        s_memrealtime s[72:73]
        s_waitcnt lgkmcnt(0)
        s_sub_u32 s72, s72, s{sStamp}
        s_cmp_lt_u32 s72, {cfg.pad*100}
        s_cbranch_scc1 L_pad
        """)
    if cfg.stamps:
        e(f"""
        s_waitcnt vmcnt(0)
        s_memrealtime {sp(sStamp+16)}
        s_waitcnt lgkmcnt(0)
        s_mul_i32 s{sT0}, s2, {9*8}
        s_add_u32 s{sT0}, s{sT0}, 0x10000000
        v_mov_b32 v{vT}, s{sT0}
        s_mov_b64 exec, 1
        """)
        for i in range(9):
            e(f"""
            v_mov_b32 v{vE}, s{sStamp+2*i}
            v_mov_b32 v{vE+1}, s{sStamp+2*i+1}
            global_store_dwordx2 v{vT}, v[{vE}:{vE+1}], {sp(sWs)} offset:{8*i}
            s_nop 1
            """)
    e(f"""
    s_endpgm
    L_fail:
    v_mov_b32 v{vT}, s{sT0}
    v_mov_b32 v{vT+1}, 0
    s_mov_b64 exec, 1
    global_store_dword v{vT+1}, v{vT}, {sp(sDbg)}
    L_end:
    s_endpgm
    L_codeend:
    """)
    nv = (NV + 7) // 8 * 8
    L.append('.section .rodata,"a"')
    L.append(".p2align 6")
    L.append(f".amdhsa_kernel {NAME}_kernel")
    L.append(f"  .amdhsa_next_free_vgpr {nv}")
    L.append("  .amdhsa_next_free_sgpr 96")
    L.append(f"  .amdhsa_accum_offset {min(256, nv)}")
    L.append("  .amdhsa_group_segment_fixed_size 0")
    L.append("  .amdhsa_kernarg_size 104")
    L.append("  .amdhsa_user_sgpr_count 2")
    L.append("  .amdhsa_user_sgpr_kernarg_segment_ptr 1")
    L.append("  .amdhsa_system_sgpr_workgroup_id_x 1")
    L.append("  .amdhsa_float_denorm_mode_32 3")
    L.append(".end_amdhsa_kernel")
    return "\n".join(L) + "\n"


if __name__ == "__main__":
    out = sys.argv[1]
    kw = {}
    for a in sys.argv[2:]:
        k, v = a.split("=")
        try:
            v = int(v)
        except ValueError:
            v = v.replace("+", " ")
        kw[k] = v
    open(out, "w").write(gen(Cfg(**kw)))
```
